```python
import torch

def _softmax(x, axis=-1):
    return torch.softmax(x, dim=axis)

def _gelu(x):
    return torch.nn.functional.gelu(x, approximate='tanh')

def _silu(x):
    return torch.nn.functional.silu(x)

def _sigmoid(x):
    return torch.sigmoid(x)

def _layernorm(x, axis=-1, eps=1e-05):
    m = x.mean(dim=axis, keepdim=True)
    v = x.var(dim=axis, keepdim=True, unbiased=False)
    return (x - m) / torch.sqrt(v + eps)

def _scatter_add(tgt, idx, src, axis=0):
    return tgt.clone().index_add_(axis, idx, src)

def _segment_sum(src, seg, n):
    out = torch.zeros((n,) + src.shape[1:], dtype=src.dtype)
    return out.index_add_(0, seg, src)

def _pad(x, pw):
    flat = tuple((v for pair in reversed(pw) for v in pair))
    return torch.nn.functional.pad(x, flat)
kernel_name = 'gated_mix__ssm_conv_h3__mixer_gmlp__prompt'

def setup_inputs():

    _w = lambda a: (lambda t: t.to(torch.bfloat16) if t.is_floating_point() else t)(torch.as_tensor(a))

    def _A_setup():
        B, S, D = (1, 2048, 448)
        ks = 4
        return {'q': _w((lambda *s: torch.randn(*s, dtype=torch.bfloat16) * 0.05)(B, S, D)), 'k': _w((lambda *s: torch.randn(*s, dtype=torch.bfloat16) * 1.6)(B, S, D)), 'v': _w((lambda *s: torch.randn(*s, dtype=torch.bfloat16) * 1.6)(B, S, D)), 'shift_k': _w((lambda *s: torch.randn(*s, dtype=torch.bfloat16) * 1.6)(D, ks) * 0.5), 'ssm_k': _w((lambda *s: torch.randn(*s, dtype=torch.bfloat16) * 3.2)(D, S) * (1.0 / S ** 0.5)), 'ssm_D': _w((lambda *s: torch.randn(*s, dtype=torch.bfloat16) * 1.6)(D))}
    _A_in = _A_setup()

    def _B_setup():
        B, S, D, F = (1, 2048, 448, 1792)
        Fh = F // 2
        return {'x': _w((lambda *s: torch.randn(*s, dtype=torch.bfloat16) * 0.05)(B, S, D)), 'w_in': _w((lambda *s: torch.randn(*s, dtype=torch.bfloat16) * 0.8)(D, 2 * Fh)), 'w_sp': _w(0.01 * (lambda *s: torch.randn(*s, dtype=torch.bfloat16) * 0.8)(S, S)), 'b_sp': _w(1.0 + 0.01 * (lambda *s: torch.randn(*s, dtype=torch.bfloat16) * 0.1)(S)), 'w_out': _w((lambda *s: torch.randn(*s, dtype=torch.bfloat16) * 0.1)(Fh, D))}
    _B_in = _B_setup()
    return {'A_q': _A_in['q'], 'A_k': _A_in['k'], 'A_v': _A_in['v'], 'A_shift_k': _A_in['shift_k'], 'A_ssm_k': _A_in['ssm_k'], 'A_ssm_D': _A_in['ssm_D'], 'B_x': _B_in['x'], 'B_w_in': _B_in['w_in'], 'B_w_sp': _B_in['w_sp'], 'B_b_sp': _B_in['b_sp'], 'B_w_out': _B_in['w_out'], 'gate_w': _w((lambda *s: torch.randn(*s, dtype=torch.bfloat16) * 0.05)(448) * 16.0)}

def reference(A_q, A_k, A_v, A_shift_k, A_ssm_k, A_ssm_D, B_x, B_w_in, B_w_sp, B_b_sp, B_w_out, gate_w):

    def _A_ref(q, k, v, shift_k, ssm_k, ssm_D):
        B, S, D = q.shape
        ks = shift_k.shape[-1]
        k_pad = _pad(k, ((0, 0), (ks - 1, 0), (0, 0)))
        k_shift = torch.zeros_like(k)
        for t in range(ks):
            k_shift = k_shift + k_pad[:, t:t + S, :] * shift_k[:, ks - 1 - t][None, None, :]
        kv = k_shift * v
        L = 2 * S
        kv_pad = _pad(kv, ((0, 0), (0, S), (0, 0)))
        kf_pad = _pad(ssm_k, ((0, 0), (0, S)))
        kv_f = (lambda x, axes=(-2, -1): torch.fft.rfft2(x.float(), dim=axes))(kv_pad[:, None, :, :], axes=(1, 2))
        kf_f = (lambda x, axes=(-2, -1): torch.fft.rfft2(x.float(), dim=axes))(kf_pad[:, None, :], axes=(1, 2))
        kf_f = (lambda x, *d: x.permute(*d))(kf_f, 1, 2, 0)
        y_f = kv_f * kf_f[None, :, :, :]
        y = (lambda x, s, axes=(-2, -1): torch.fft.irfft2(x, s=s, dim=axes).to(torch.bfloat16))(y_f, (1, L), axes=(1, 2))[:, 0, :S, :]
        y = y + kv * ssm_D[None, None, :]
        return q * y

    def _B_ref(x, w_in, w_sp, b_sp, w_out):
        B, S, D = x.shape
        F = w_in.shape[-1]
        Fh = F // 2
        z = _gelu(torch.einsum('bsd,df->bsf', x, w_in))
        z1 = z[..., :Fh].clone()
        z2 = _layernorm(z[..., Fh:], axis=-1)
        g = torch.einsum('ts,bsf->btf', w_sp, z2) + b_sp[None, :, None]
        return torch.einsum('bsf,fd->bsd', z1 * g, w_out)
    x = A_q
    g = _sigmoid((x * gate_w).sum(-1, keepdims=True))
    a = _A_ref(x, A_k, A_v, A_shift_k, A_ssm_k, A_ssm_D)
    b = _B_ref(x, B_w_in, B_w_sp, B_b_sp, B_w_out)
    return g * a + (1 - g) * b
```

```python
import re

class Alloc:
    def __init__(self, lo, hi):
        self.lo, self.hi = lo, hi
        self.used = {}
        self.peak = lo
    def get(self, n, name='', align=None):
        al = align or (1 if n == 1 else 2 if n in (2, 3) else 4)
        r = self.lo
        while r + n <= self.hi:
            if r % al == 0 and all((r + i) not in self.used for i in range(n)):
                for i in range(n): self.used[r + i] = name
                self.peak = max(self.peak, r + n)
                return r
            r += 1
        raise RuntimeError(f'out of registers for {name} ({n}); used: {sorted(set(self.used.values()))}')
    def free(self, r, n):
        for i in range(n):
            assert (r + i) in self.used, (r, n)
            del self.used[r + i]

def vr(r, n=1, p='v'):
    return f'{p}{r}' if n == 1 else f'{p}[{r}:{r+n-1}]'
def ar(r, n=1): return vr(r, n, 'a')
def sr(r, n=1): return vr(r, n, 's')

REG = re.compile(r'\b([vas])(\d+)\b|\b([vas])\[(\d+):(\d+)\]|\b(vcc|exec|m0)\b')
def regs_of(op):
    out = set()
    for m in REG.finditer(op):
        if m.group(1): out.add((m.group(1), int(m.group(2))))
        elif m.group(3): out.update((m.group(3), i) for i in range(int(m.group(4)), int(m.group(5)) + 1))
        else: out.add((m.group(6), 0))
    return out

TRANS = ('v_exp_f32', 'v_log_f32', 'v_rcp_f32', 'v_rsq_f32', 'v_sqrt_f32', 'v_sin_f32', 'v_cos_f32')
class Ins:
    __slots__ = ('text', 'mn', 'w', 'r', 'kind', 'ops', 'passes', 'dpp', 'srcc', 'srcab', 'data')
    def __init__(self, text):
        self.text = text
        t = text.split(';')[0].strip()
        self.w, self.r, self.srcc, self.srcab, self.data = set(), set(), set(), set(), set()
        self.passes = 0; self.dpp = False
        if not t or t.endswith(':') or t.startswith('.'):
            self.mn = ''; self.kind = 'label' if t.endswith(':') else 'none'; self.ops = []
            return
        parts = t.split(None, 1)
        mn = self.mn = parts[0]
        rest = parts[1] if len(parts) > 1 else ''
        ops = [o.strip() for o in re.split(r',(?![^\[]*\])', rest)] if rest else []
        self.ops = ops
        R = [regs_of(o) for o in ops]
        allr = lambda xs: set().union(*xs) if xs else set()
        if mn.startswith('v_mfma'):
            self.kind = 'mfma'; self.passes = 8 if '32x32' in mn else 4
            self.w = R[0]; self.srcab = R[1] | R[2]; self.srcc = R[3]; self.r = self.srcab | self.srcc
        elif mn.startswith('v_'):
            self.kind = 'valu'
            self.dpp = ('_dpp' in mn) or ('quad_perm' in t) or ('row_' in t)
            if mn.startswith(('v_swap', 'v_permlane')):
                self.w = R[0] | R[1]; self.r = R[0] | R[1]
            elif mn.startswith(('v_add_co', 'v_sub_co', 'v_addc_co', 'v_subb_co')):
                self.w = R[0] | R[1]; self.r = allr(R[2:])
            elif mn.startswith('v_cmpx'):
                self.w = R[0] | {('exec', 0)}; self.r = allr(R[1:])
            else:
                self.w = R[0]; self.r = allr(R[1:])
                if mn.startswith(('v_fmac', 'v_writelane', 'v_dot2c')) or self.dpp or 'sdwa' in mn: self.r |= R[0]
        elif mn.startswith(('buffer_', 'global_')):
            self.kind = 'vmem'
            if mn.startswith(('buffer_inv', 'buffer_wbl2')): return
            islds = bool(re.search(r'\blds\b', t)) or '_lds_' in mn
            if islds:
                self.r = allr(R) | {('m0', 0)}
            elif 'load' in mn:
                self.w = R[0]; self.r = allr(R[1:])
                if 'd16' in mn: self.r |= R[0]
            else:
                self.r = allr(R)
                d = R[0] if mn.startswith('buffer_') else R[1]
                if 'x4' in mn or 'x3' in mn: self.data = d
        elif mn.startswith('ds_'):
            self.kind = 'ds'
            if 'read' in mn or 'permute' in mn or 'swizzle' in mn:
                self.w = R[0]; self.r = allr(R[1:])
            else:
                self.r = allr(R)
        elif mn.startswith(('s_load', 's_memtime', 's_memrealtime', 's_buffer_load')):
            self.kind = 'smem'; self.w = R[0]; self.r = allr(R[1:])
        elif mn.startswith('s_'):
            self.kind = 'salu'
            if mn.startswith(('s_cmp', 's_cbranch', 's_branch', 's_waitcnt', 's_barrier', 's_nop', 's_sleep', 's_endpgm', 's_setprio', 's_bitcmp')):
                self.r = allr(R)
            else:
                self.w = R[0] if R else set(); self.r = allr(R[1:])
                if 'saveexec' in mn: self.w |= {('exec', 0)}
        else:
            raise RuntimeError('unknown instruction ' + text)
    def states(self):
        if self.kind in ('label', 'none'): return 0
        if self.mn == 's_nop': return int(self.ops[0], 0) + 1
        return 1

def need(p, c):
    n = 0
    vec = lambda s: {x for x in s if x[0] in 'va' and len(x[0]) == 1}
    sg = lambda s: {x for x in s if x[0] == 's' or x[0] == 'vcc'}
    if p.kind == 'mfma':
        big = 12 if p.passes == 8 else 8
        if c.kind == 'mfma':
            if p.w & c.srcab: n = max(n, big)
            if p.w & c.srcc and not (p.w == c.srcc and p.passes == c.passes): n = max(n, 10 if p.passes == 8 else 6)
            if (p.w & c.w) and not (p.w & c.srcc): n = max(n, big)
        elif c.kind in ('valu', 'vmem', 'ds'):
            if p.w & (c.r | c.w): n = max(n, big)
            if c.kind == 'valu' and (p.srcc & c.w): n = max(n, 7 if p.passes == 8 else 3)
            if c.kind in ('vmem', 'ds') and (p.srcc & c.w): n = max(n, 7 if p.passes == 8 else 3)
    if p.kind == 'valu':
        if c.kind == 'mfma' and (vec(p.w) & c.r): n = max(n, 2)
        if c.kind == 'mfma' and ('exec', 0) in p.w: n = max(n, 4)
        if c.kind == 'valu':
            if c.dpp and (vec(p.w) & c.r): n = max(n, 2)
            if c.mn.startswith('v_permlane') and (vec(p.w) & c.r): n = max(n, 2)
            if c.mn.startswith(('v_readlane', 'v_readfirstlane')) and (vec(p.w) & c.r): n = max(n, 1)
            if p.mn.startswith(TRANS) and (p.w & c.r): n = max(n, 1)
            if sg(p.w) & c.r: n = max(n, 4 if c.mn.startswith(('v_readlane', 'v_writelane')) else 2)
            if ('sdwa' in p.mn or 'op_sel' in p.text) and (p.w & (c.r | c.w)): n = max(n, 1)
            if ('exec', 0) in p.w: n = max(n, 5)
        if c.kind == 'vmem' and (sg(p.w) & c.r): n = max(n, 5)
        if c.kind == 'salu' and (sg(p.w) & c.r): n = max(n, 1)
        if c.mn.startswith('s_cbranch_vcc') and ('vcc', 0) in p.w: n = max(n, 5)
    if p.kind == 'salu' and ('m0', 0) in p.w and c.kind in ('vmem', 'ds') and ('m0', 0) in c.r: n = max(n, 1)
    if p.kind == 'vmem' and p.data and (p.data & c.w): n = max(n, 2)
    return n

def fix_hazards(lines):
    out = []
    for text in lines:
        c = Ins(text)
        if c.kind not in ('label', 'none'):
            dist = 0; req = 0
            for p in reversed(out):
                if dist >= 12: break
                req = max(req, need(p, c) - dist)
                dist += p.states()
            while req > 0:
                k = min(req, 16)
                out.append(Ins(f's_nop {k-1}')); req -= k
        out.append(c)
    return [i.text for i in out]

class Stream:
    def __init__(self):
        self.items = []
    def __call__(self, text, tag=None):
        for t in text.strip().split('\n'):
            t = t.strip()
            if t: self.items.append((t, None))
        if tag is not None:
            t, _ = self.items[-1]; self.items[-1] = (t, tag)
        return tag
    def wait(self, *tags):
        self.items.append(('@wait', tags))
    def waitall(self, vm=True, lgkm=True):
        self.items.append(('@waitall', (vm, lgkm)))
    def extend(self, other):
        self.items += other.items
    def __len__(self): return len(self.items)

def merge(main, fill, every=None, start=0, end=None, per=None):
    idx = [i for i, (t, _) in enumerate(main.items) if t.startswith('v_mfma')]
    end = len(idx) if end is None else min(end, len(idx))
    n = max(end - start, 1)
    out = Stream(); k = 0; m = 0
    for i, it in enumerate(main.items):
        out.items.append(it)
        if it[0].startswith('v_mfma'):
            if start <= m < end:
                tgt = (len(fill.items) * (m - start + 1) + n - 1) // n if per is None else min(len(fill.items), k + per)
                while k < tgt:
                    out.items.append(fill.items[k]); k += 1
            m += 1
    while k < len(fill.items):
        out.items.append(fill.items[k]); k += 1
    return out

_uid = [0]
def T(name='t'):
    _uid[0] += 1
    return f'{name}#{_uid[0]}'

def resolve(stream):
    lines = []
    vm_seq = 0; lg_seq = 0
    vm_done = 0; lg_done = 0
    smem_pending = False
    pos = {}
    for t, tag in stream.items:
        if t == '@wait':
            nv = nl = None
            for g in tag:
                assert g in pos, f'wait on unknown tag {g}'
                k, s = pos[g]
                if k == 'vm':
                    if s > vm_done: nv = vm_seq - s if nv is None else min(nv, vm_seq - s)
                else:
                    if s > lg_done: nl = lg_seq - s if nl is None else min(nl, lg_seq - s)
            parts = []
            if nv is not None:
                nv = min(nv, 63); parts.append(f'vmcnt({nv})'); vm_done = max(vm_done, vm_seq - nv)
            if nl is not None:
                if smem_pending: nl = 0
                nl = min(nl, 15); parts.append(f'lgkmcnt({nl})'); lg_done = max(lg_done, lg_seq - nl)
                if nl == 0: smem_pending = False
            if parts: lines.append('s_waitcnt ' + ' '.join(parts))
            continue
        if t == '@waitall':
            parts = []
            if tag[0]: parts.append('vmcnt(0)'); vm_done = vm_seq
            if tag[1]: parts.append('lgkmcnt(0)'); lg_done = lg_seq; smem_pending = False
            lines.append('s_waitcnt ' + ' '.join(parts))
            continue
        assert not t.startswith('s_waitcnt'), 'use wait()/waitall()'
        mn = t.split()[0]
        if mn.startswith(('buffer_', 'global_')):
            vm_seq += 1
            if tag: pos[tag] = ('vm', vm_seq)
        elif mn.startswith('ds_'):
            lg_seq += 1
            if tag: pos[tag] = ('lg', lg_seq)
        elif mn.startswith(('s_load', 's_memtime', 's_memrealtime')):
            lg_seq += 1; smem_pending = True
            if tag: pos[tag] = ('lg', lg_seq)
        lines.append(t)
    return lines
```

```python
import sys, struct
sys.path.insert(0, 'gen')
from asmlib import *

NAME = 'gated_mix__ssm_conv_h3__mixer_gmlp__prompt'
PROFILE = '--prof' in sys.argv
OUTP = [a for a in sys.argv[1:] if not a.startswith('--')]
OUTP = OUTP[0] if OUTP else f'cdna_kernels/{NAME}.s'

def f32(x): return '0x%08x' % struct.unpack('<I', struct.pack('<f', x))[0]

WS_F1, WS_FH, WS_FY, WS_FA, WS_FB = 0x10000, 0x18000, 0x20000, 0x28000, 0x48000
WS_ST, WS_KVT, WS_Y, WS_Z2, WS_H, WS_PART, WS_PROF = 0x80000, 0x100000, 0x300000, 0x500000, 0x900000, 0xD00000, 0x1400000
WS_SIZE = 0x1500000
L_W = 0; L_XS = 57344; XS_W = 20480; L_KS = 139264; L_VS = L_KS + 9*1040; L_GATE = 157696; L_STAT = 158720
L_RED = 114688; L_HC = 139264; HSTR = 4160; L_U = L_RED; USTR = 4608; L_CB = 0
LDS = 163840
NSLOT = 5

V = Alloc(1, 256)
S = Alloc(4, 100)
P = Stream()

sX, sK, sV, sHK, sWI, sWS, sWO, sO, sWK, sG = [S.get(4, n) for n in 'X K V HK WI WSP WO O WK G'.split()]
sSH, sD, sB = [S.get(2, n) for n in 'SH D B'.split()]
s_w, s_j, s_kh, s_tb, s_jf, s_t64, s_lid, s_tag = [S.get(1, n) for n in 'w j kh tb jf t64 lid tag'.split()]
s0, s1, s2_, s3_ = [S.get(1, f'tmp{i}') for i in range(4)]
sEX = S.get(2, 'execsave'); sKHM = S.get(2, 'khmask'); sC = S.get(2, 'const')
s_cnt = S.get(1, 'pollcnt')
s_kc = S.get(7, 'kchunk', align=1)
s_xs = S.get(1, 'xsbase')
s_row = S.get(1, 'rowoff')
nstamp = [0]
s_st = S.get(2, 'stamps') if PROFILE else None
vPROF = V.get(1, 'prof') if PROFILE else None
def stamp(p=None):
    if PROFILE:
        p = p or P
        i = nstamp[0]; nstamp[0] += 1
        assert i < 32
        if i > 0:
            p.waitall(vm=False)
            p(f'v_writelane_b32 {vr(vPROF)}, {sr(s_st)}, {i-1}')
        p(f's_memrealtime {sr(s_st, 2)}')

lab = [0]
def label(n):
    lab[0] += 1
    return f'L_{n}_{lab[0]}'

def dma(p, vaddr, srd, soff, lds_s, lds_imm, flags='', tag=None):
    if lds_s is None: p(f's_mov_b32 m0, {lds_imm}')
    else: p(f's_add_u32 m0, {sr(lds_s)}, {lds_imm}')
    return p(f'buffer_load_dwordx4 {vr(vaddr)}, {sr(srd,4)}, {soff} offen {flags} lds', tag or T('dma'))

def poll(p, vaddr, soff, vtmp):
    l0, l1 = label('poll'), label('pollok')
    p(f's_mov_b32 {sr(s_cnt)}, 0')
    p(f'{l0}:')
    p(f'buffer_load_dword {vr(vtmp)}, {vr(vaddr)}, {sr(sWK,4)}, {soff} offen sc1')
    p.waitall(vm=True, lgkm=False)
    p(f'v_cmp_ne_u32 vcc, {sr(s_tag)}, {vr(vtmp)}')
    p(f's_cbranch_vccz {l1}')
    p(f's_add_u32 {sr(s_cnt)}, {sr(s_cnt)}, 1')
    p(f's_cmp_lt_u32 {sr(s_cnt)}, 20000')
    p(f's_cbranch_scc1 {l0}')
    p(f'{l1}:')

stamp()
P('s_cmp_ge_u32 s2, 224')
P('s_cbranch_scc1 L_end')
for reg, slot in ((sX,0),(sWI,7),(sK,1),(sV,2),(sSH,3),(sHK,4),(sD,5),(sWS,8),(sB,9),(sWO,10),(sG,11),(sO,12),(sWK,14)):
    P(f's_load_dwordx2 {sr(reg,2)}, s[0:1], {slot*8}')
for reg, size in ((sX,1835008),(sK,1835008),(sV,1835008),(sHK,1835008),(sWI,1605632),(sWS,8388608),(sWO,802816),(sO,1835008),(sWK,WS_SIZE),(sG,896)):
    P(f's_mov_b32 {sr(reg+2)}, {size}')
    P(f's_mov_b32 {sr(reg+3)}, 0x20000')
vL = 0
vt0, vt1, vt2 = [V.get(1, f't{i}') for i in range(3)]
vTAG = V.get(4, 'tag4'); vQ = V.get(8, 'q'); vGT = V.get(4, 'gate'); vZ = V.get(32, 'zz')
vWR = V.get(4, 'wr', align=1); vBS = V.get(2, 'bsp', align=1)
vL16, vCOL, vFL, vFLW, vDD = [V.get(1, n) for n in 'lane16 colflags flagoff flagoffw ssmD'.split()]
P(f'v_lshrrev_b32 {vr(vt0)}, 6, v0')
P(f'v_and_b32 v0, 63, v0')
P(f'v_readfirstlane_b32 {sr(s_w)}, {vr(vt0)}')
P(f'''
s_and_b32 {sr(s_kh)}, s2, 1
s_lshr_b32 {sr(s0)}, s2, 3
s_mul_i32 {sr(s1)}, {sr(s0)}, 37
s_lshr_b32 {sr(s1)}, {sr(s1)}, 8
s_mul_i32 {sr(s2_)}, {sr(s1)}, 7
s_sub_u32 {sr(s_j)}, {sr(s0)}, {sr(s2_)}
s_and_b32 {sr(s0)}, s2, 6
s_lshl_b32 {sr(s0)}, {sr(s0)}, 1
s_add_u32 {sr(s_tb)}, {sr(s0)}, {sr(s1)}
s_lshl_b32 {sr(s0)}, {sr(s_j)}, 1
s_add_u32 {sr(s_jf)}, {sr(s0)}, {sr(s_kh)}
s_lshl_b32 {sr(s0)}, {sr(s_tb)}, 1
s_add_u32 {sr(s_t64)}, {sr(s0)}, {sr(s_kh)}
s_lshl_b32 {sr(s0)}, {sr(s_j)}, 5
s_add_u32 {sr(s_lid)}, {sr(s0)}, {sr(s_t64)}
s_cmp_eq_u32 {sr(s_kh)}, 1
s_cselect_b64 {sr(sKHM,2)}, -1, 0
s_mul_i32 {sr(s_xs)}, {sr(s_w)}, {XS_W}
s_add_u32 {sr(s_xs)}, {sr(s_xs)}, {L_XS}
''')
for cs in range(7):
    P(f's_add_u32 {sr(s0)}, {sr(s_j)}, {cs}')
    P(f's_sub_u32 {sr(s1)}, {sr(s0)}, 7')
    P(f's_cmp_ge_u32 {sr(s0)}, 7')
    P(f's_cselect_b32 {sr(s0)}, {sr(s1)}, {sr(s0)}')
    P(f's_lshl_b32 {sr(s_kc+cs)}, {sr(s0)}, 7')
vWI, vXE, vXO = V.get(1,'wi_src'), V.get(1,'x_even'), V.get(1,'x_odd')
vR8, vUW, vUE, vUO = V.get(1,'row8'), V.get(1,'unit_w'), V.get(1,'unit_e'), V.get(1,'unit_o')
P(f'''
v_lshrrev_b32 {vr(vR8)}, 3, v0
v_and_b32 {vr(vt0)}, 7, v0
v_lshrrev_b32 {vr(vt1)}, 4, v0
v_lshlrev_b32 {vr(vt2)}, 1, {vr(vt1)}
v_xor_b32 {vr(vUW)}, {vr(vt0)}, {vr(vt2)}
v_lshlrev_b32 {vr(vUW)}, 4, {vr(vUW)}
v_xor_b32 {vr(vUE)}, {vr(vt0)}, {vr(vt1)}
v_lshlrev_b32 {vr(vUE)}, 4, {vr(vUE)}
v_xor_b32 {vr(vUO)}, 64, {vr(vUE)}
v_mul_u32_u24 {vr(vWI)}, 3584, {vr(vR8)}
v_add_u32 {vr(vWI)}, {vr(vWI)}, {vr(vUW)}
v_mul_u32_u24 {vr(vt0)}, 896, {vr(vR8)}
v_add_u32 {vr(vXE)}, {vr(vt0)}, {vr(vUE)}
v_add_u32 {vr(vXO)}, {vr(vt0)}, {vr(vUO)}
v_add_u32 {vr(vXO)}, {8*896}, {vr(vXO)}
''')
P.waitall(vm=False)
P(f's_load_dword {sr(s_tag)}, {sr(sWK,2)}, 0', 'epoch')

def issue_w(p, colbyte_s_expr):
    tags = []
    p(f's_lshl_b32 {sr(s2_)}, {sr(s_w)}, 11')
    p(f's_mul_i32 {sr(s1)}, {sr(s_w)}, {16*3584}')
    p(f's_add_u32 {sr(s1)}, {sr(s1)}, {sr(s3_)}')
    for cs in range(7):
        p(f's_mul_i32 {sr(s0)}, {sr(s_kc+cs)}, {64*3584//128}')
        p(f's_add_u32 {sr(s0)}, {sr(s0)}, {sr(s1)}')
        tags.append(dma(p, vWI, sWI, sr(s0), s2_, L_W + cs*8192))
        p(f's_add_u32 {sr(s0)}, {sr(s0)}, {8*3584}')
        tags.append(dma(p, vWI, sWI, sr(s0), s2_, L_W + cs*8192 + 1024))
    return tags
P(f's_lshl_b32 {sr(s3_)}, {sr(s_jf)}, 7')
P(f's_add_u32 {sr(s3_)}, {sr(s3_)}, 1792')
w2tags = issue_w(P, None)
P(f's_lshl_b32 {sr(s0)}, {sr(s_tb)}, 2')
P(f's_add_u32 {sr(s0)}, {sr(s0)}, {sr(s_w)}')
P(f's_mul_i32 {sr(s_row)}, {sr(s0)}, {32*896}')
def issue_x(p, cs):
    slot = cs % NSLOT
    p(f's_add_u32 {sr(s0)}, {sr(s_row)}, {sr(s_kc+cs)}')
    dma(p, vXE, sX, sr(s0), s_xs, slot*4096)
    dma(p, vXO, sX, sr(s0), s_xs, slot*4096 + 1024)
    p(f's_add_u32 {sr(s0)}, {sr(s0)}, {16*896}')
    dma(p, vXE, sX, sr(s0), s_xs, slot*4096 + 2048)
    return dma(p, vXO, sX, sr(s0), s_xs, slot*4096 + 3072)
xtag = {}
for cs in range(NSLOT): xtag[cs] = issue_x(P, cs)

vXR = V.get(4, 'xr', align=1)
P(f'''
v_and_b32 {vr(vt0)}, 15, v0
v_lshrrev_b32 {vr(vt1)}, 5, v0
v_lshrrev_b32 {vr(vt2)}, 1, {vr(vt0)}
v_xor_b32 {vr(vt1)}, {vr(vt1)}, {vr(vt2)}
v_lshlrev_b32 {vr(vt1)}, 4, {vr(vt1)}
v_lshl_add_u32 {vr(vt1)}, {vr(vt0)}, 7, {vr(vt1)}
v_bfe_u32 {vr(vt2)}, v0, 4, 1
v_lshl_add_u32 {vr(vt1)}, {vr(vt2)}, 3, {vr(vt1)}
''')
for c in range(4):
    P(f'v_xor_b32 {vr(vXR+c)}, {32*c}, {vr(vt1)}')
    P(f'v_add_u32 {vr(vXR+c)}, {sr(s_xs)}, {vr(vXR+c)}')
P(f'''
v_lshrrev_b32 {vr(vt0)}, 2, v0
v_bfe_u32 {vr(vt1)}, v0, 3, 2
v_lshlrev_b32 {vr(vt1)}, 5, {vr(vt1)}
v_lshl_add_u32 {vr(vt1)}, {vr(vt0)}, 7, {vr(vt1)}
v_and_b32 {vr(vt2)}, 3, v0
v_lshl_add_u32 {vr(vt1)}, {vr(vt2)}, 3, {vr(vt1)}
''')
for nt in range(4):
    P(f'v_xor_b32 {vr(vWR+nt)}, {32*nt}, {vr(vt1)}')
P(f'v_lshlrev_b32 {vr(vL16)}, 4, v0')
P.wait('epoch')
P(f's_add_u32 {sr(s_tag)}, {sr(s_tag)}, 0x9E3779B9')

vX = V.get(112, 'xfrags')
xf = lambda ks, a: vX + (ks*2 + a)*4
vWF = V.get(32, 'wfrags')
def read_x(p, cs):
    slot = cs % NSLOT
    tg = None
    for k2 in range(2):
        for a in range(2):
            for h in range(2):
                tg = p(f'ds_read_b64 {vr(xf(2*cs+k2, a)+2*h, 2)}, {vr(vXR+2*k2+h)} offset:{slot*4096 + a*2048}', T('xr'))
    return tg
def read_w(p, ks, dst, addr=vWR, agpr=False):
    tg = []
    for nt in range(4):
        for h in range(2):
            d = ar(dst+nt*4+2*h, 2) if agpr else vr(dst+nt*4+2*h, 2)
            t = p(f'ds_read_b64_tr_b16 {d}, {vr(addr+nt)} offset:{ks*4096 + h*2048}', T('wr'))
        tg.append(t)
    return tg

P.wait(w2tags[-1])
P('s_barrier')
stamp()
kvtags = []
def issue_kv(p):
    vKV = V.get(1, 'kv_src'); vKH = V.get(1, 'kh_src')
    p(f'v_and_b32 {vr(vt0)}, 7, v0')
    p(f'v_lshlrev_b32 {vr(vt0)}, 4, {vr(vt0)}')
    p(f'v_mul_u32_u24 {vr(vKV)}, 896, {vr(vR8)}')
    p(f'v_add_u32 {vr(vKV)}, {vr(vKV)}, {vr(vt0)}')
    p(f's_mul_i32 {sr(s1)}, {sr(s_t64)}, {64*896}')
    p(f's_lshl_b32 {sr(s0)}, {sr(s_j)}, 7')
    p(f's_add_u32 {sr(s1)}, {sr(s1)}, {sr(s0)}')
    p(f's_sub_u32 {sr(s0)}, {sr(s1)}, {8*896}')
    p(f'v_add_u32 {vr(vKH)}, {sr(s0)}, {vr(vKV)}')
    p(f's_mul_i32 {sr(s0)}, {sr(s_w)}, {16*896}')
    p(f's_add_u32 {sr(s1)}, {sr(s1)}, {sr(s0)}')
    p(f's_mul_i32 {sr(s2_)}, {sr(s_w)}, 2080')
    dma(p, vKV, sK, sr(s1), s2_, L_KS + 1040)
    dma(p, vKV, sV, sr(s1), s2_, L_VS)
    p(f's_add_u32 {sr(s1)}, {sr(s1)}, {8*896}')
    dma(p, vKV, sK, sr(s1), s2_, L_KS + 2080)
    dma(p, vKV, sV, sr(s1), s2_, L_VS + 1040)
    p(f's_lshl_b32 {sr(s0)}, {sr(s_w)}, 4')
    p(f's_lshl_b64 exec, 0xffff, {sr(s0)}')
    dma(p, vKH, sK, '0', None, L_KS)
    p(f's_mov_b64 exec, -1')
    p(f'v_add_u32 {vr(vt1)}, {sr(s_j)}, {vr(vR8)}')
    p(f'v_subrev_u32 {vr(vt2)}, 7, {vr(vt1)}')
    p(f'v_min_u32 {vr(vt1)}, {vr(vt1)}, {vr(vt2)}')
    p(f'v_lshl_add_u32 {vr(vt1)}, {vr(vt1)}, 7, {vr(vt0)}')
    p(f's_lshl_b64 exec, 0xffff, {sr(s0)}')
    t = dma(p, vt1, sG, '0', None, L_GATE)
    p(f's_mov_b64 exec, -1')
    V.free(vKV, 1); V.free(vKH, 1)
    return t

def gemm7(p, acc, xa, first_reads_x):
    wt = read_w(p, 0, vWF)
    for ks in range(14):
        cs = ks // 2
        if first_reads_x and ks % 2 == 0:
            p.wait(xtag[cs])
            xr = read_x(p, cs)
        cur = vWF + 16*(ks % 2)
        nxt = read_w(p, ks+1, vWF + 16*((ks+1) % 2)) if ks < 13 else None
        if first_reads_x and ks % 2 == 0:
            p.wait(xr)
            if cs + NSLOT < 7: xtag[cs+NSLOT] = issue_x(p, cs + NSLOT)
            if cs == 1: kvtags.append(issue_kv(p))
        for nt in range(4):
            p.wait(wt[nt])
            for a in range(2):
                d = vr(acc + (a*4+nt)*4, 4)
                A, B = vr(xf(ks, a), 4), vr(cur + nt*4, 4)
                if not xa: A, B = B, A
                p(f'v_mfma_f32_16x16x32_bf16 {d}, {A}, {B}, {"0" if ks == 0 else d}')
        wt = nxt
gemm7(P, vZ, True, True)
V.free(vWF, 32)
P('s_barrier')
stamp()
P(f's_lshl_b32 {sr(s3_)}, {sr(s_jf)}, 7')
w1tags = issue_w(P, None)

vSH = V.get(4, 'shift')
P(f'''
s_lshl_b32 {sr(s0)}, {sr(s_j)}, 9
s_lshl_b32 {sr(s1)}, {sr(s_w)}, 7
s_add_u32 {sr(s0)}, {sr(s0)}, {sr(s1)}
v_lshl_add_u32 {vr(vt0)}, {vr(vR8)}, 4, {sr(s0)}
''')
P(f'global_load_dwordx4 {vr(vSH,4)}, {vr(vt0)}, {sr(sSH,2)}', 'shift')
P(f'''
s_lshl_b32 {sr(s0)}, {sr(s_tb)}, 8
s_lshl_b32 {sr(s1)}, {sr(s_w)}, 6
s_add_u32 {sr(s0)}, {sr(s0)}, {sr(s1)}
v_and_b32 {vr(vt0)}, 15, v0
v_lshl_add_u32 {vr(vt0)}, {vr(vt0)}, 1, {sr(s0)}
''')
P(f'global_load_ushort {vr(vBS)}, {vr(vt0)}, {sr(sB,2)}')
P(f'global_load_ushort {vr(vBS+1)}, {vr(vt0)}, {sr(sB,2)} offset:32', 'bsp')

K1, K2 = -2.302208198, -2.302208198*0.044715
vK1 = V.get(2, 'k1')
P(f'v_mov_b32 {vr(vK1)}, {f32(K1)}')
P(f'v_mov_b32 {vr(vK1+1)}, {f32(K1)}')
P(f's_mov_b32 {sr(sC)}, {f32(K2)}')
P(f's_mov_b32 {sr(sC+1)}, {f32(K2)}')
def gelu(p, base, n):
    tmp = V.get(8, 'gelu_tmp')
    for g in range(0, n, 8):
        x = lambda i: vr(base+g+2*i, 2)
        t = lambda i: vr(tmp+2*i, 2)
        for i in range(4): p(f'v_pk_mul_f32 {t(i)}, {x(i)}, {x(i)}')
        for i in range(4): p(f'v_pk_fma_f32 {t(i)}, {t(i)}, {sr(sC,2)}, {vr(vK1,2)}')
        for i in range(4): p(f'v_pk_mul_f32 {t(i)}, {t(i)}, {x(i)}')
        for i in range(8): p(f'v_exp_f32 {vr(tmp+i)}, {vr(tmp+i)}')
        for i in range(4): p(f'v_pk_add_f32 {t(i)}, {t(i)}, 1.0 op_sel_hi:[1,0]')
        for i in range(8): p(f'v_rcp_f32 {vr(tmp+i)}, {vr(tmp+i)}')
        for i in range(4): p(f'v_pk_mul_f32 {x(i)}, {t(i)}, {x(i)}')
    V.free(tmp, 8)
gelu(P, vZ, 32)

vS = V.get(16, 'stat')
z = lambda a, nt, r: vZ + (a*4+nt)*4 + r
for a in range(2):
    for h in range(2):
        P(f'v_pk_add_f32 {vr(vS+a*4+2*h,2)}, {vr(z(a,0,2*h),2)}, {vr(z(a,1,2*h),2)}')
        P(f'v_pk_mul_f32 {vr(vS+8+a*4+2*h,2)}, {vr(z(a,0,2*h),2)}, {vr(z(a,0,2*h),2)}')
for nt in range(1, 4):
    for a in range(2):
        for h in range(2):
            if nt > 1: P(f'v_pk_add_f32 {vr(vS+a*4+2*h,2)}, {vr(vS+a*4+2*h,2)}, {vr(z(a,nt,2*h),2)}')
            P(f'v_pk_fma_f32 {vr(vS+8+a*4+2*h,2)}, {vr(z(a,nt,2*h),2)}, {vr(z(a,nt,2*h),2)}, {vr(vS+8+a*4+2*h,2)}')
vS2 = V.get(12, 'stat2')
for k in range(2):
    for r in range(4):
        P(f'v_add_f32_dpp {vr(vS2+k*4+r)}, {vr(vS+8*k+r)}, {vr(vS+8*k+r)} row_mirror row_mask:0xf bank_mask:0x3')
for k in range(2):
    for r in range(4):
        P(f'v_add_f32_dpp {vr(vS2+k*4+r)}, {vr(vS+8*k+4+r)}, {vr(vS+8*k+4+r)} row_mirror row_mask:0xf bank_mask:0xc')
for k in range(2):
    for r in range(2):
        P(f'v_add_f32_dpp {vr(vS2+8+k*2+r)}, {vr(vS2+4*k+r)}, {vr(vS2+4*k+r)} row_half_mirror row_mask:0xf bank_mask:0x5')
for k in range(2):
    for r in range(2):
        P(f'v_add_f32_dpp {vr(vS2+8+k*2+r)}, {vr(vS2+4*k+2+r)}, {vr(vS2+4*k+2+r)} row_half_mirror row_mask:0xf bank_mask:0xa')
for perm in ('[1,0,3,2]', '[2,3,0,1]'):
    for i in range(4):
        P(f'v_add_f32_dpp {vr(vS2+8+i)}, {vr(vS2+8+i)}, {vr(vS2+8+i)} quad_perm:{perm} row_mask:0xf bank_mask:0xf')
P(f'''
v_and_b32 {vr(vt0)}, 1, v0
v_cmp_eq_u32 vcc, 1, {vr(vt0)}
v_bfe_u32 {vr(vt1)}, v0, 2, 1
v_lshl_add_u32 {vr(vt0)}, {vr(vt1)}, 1, {vr(vt0)}
v_lshrrev_b32 {vr(vt1)}, 4, v0
v_lshl_add_u32 {vr(vt0)}, {vr(vt1)}, 2, {vr(vt0)}
v_bfe_u32 {vr(vt1)}, v0, 3, 1
v_lshl_add_u32 {vr(vt0)}, {vr(vt1)}, 4, {vr(vt0)}
v_lshlrev_b32 {vr(vt0)}, 4, {vr(vt0)}
v_cndmask_b32 {vr(vS)}, {vr(vS2+8)}, {vr(vS2+9)}, vcc
v_cndmask_b32 {vr(vS+2)}, {vr(vS2+10)}, {vr(vS2+11)}, vcc
v_mov_b32 {vr(vS+1)}, {sr(s_tag)}
v_mov_b32 {vr(vS+3)}, {sr(s_tag)}
s_mul_i32 {sr(s0)}, {sr(s_tb)}, {14*2048}
s_lshl_b32 {sr(s1)}, {sr(s_w)}, 9
s_add_u32 {sr(s0)}, {sr(s0)}, {sr(s1)}
s_add_u32 {sr(s3_)}, {sr(s0)}, {WS_ST}
s_lshl_b32 {sr(s1)}, {sr(s_jf)}, 11
s_add_u32 {sr(s0)}, {sr(s3_)}, {sr(s1)}
s_mov_b32 exec_lo, 0x33333333
s_mov_b32 exec_hi, 0x33333333
buffer_store_dwordx4 {vr(vS,4)}, {vr(vt0)}, {sr(sWK,4)}, {sr(s0)} offen sc1
s_mov_b64 exec, -1
''')
s_stb = S.get(1, 'statbase')
P(f's_mov_b32 {sr(s_stb)}, {sr(s3_)}')
V.free(vS2, 12); V.free(vS, 16)
stamp()

P.wait(kvtags[0], w1tags[-1], 'shift', 'bsp')
P('s_barrier')
def p0(p):
    vKk = V.get(11, 'k', align=1); vVv = V.get(8, 'v', align=1); vA = V.get(1, 'kaddr')
    p(f'''
    v_and_b32 {vr(vt0)}, 7, v0
    v_sub_u32 {vr(vt1)}, 7, {vr(vt0)}
    v_mul_u32_u24 {vr(vt1)}, 1040, {vr(vt1)}
    s_lshl_b32 {sr(s0)}, {sr(s_w)}, 5
    s_add_u32 {sr(s0)}, {sr(s0)}, {L_KS}
    v_lshl_add_u32 {vr(vA)}, {vr(vR8)}, 2, {sr(s0)}
    v_add_u32 {vr(vA)}, {vr(vA)}, {vr(vt1)}
    ''')
    for i in range(-3, 8):
        p(f'ds_read_b32 {vr(vKk+i+3)}, {vr(vA)} offset:{1040+128*i if i >= 0 else (8+i)*128}', T('k'))
    for i in range(8):
        tv = p(f'ds_read_b32 {vr(vVv+i)}, {vr(vA)} offset:{L_VS-L_KS+128*i}', T('v'))
    tap = V.get(4, 'tap'); kk = V.get(11, 'kf', align=1); ac = V.get(8, 'ac'); o = V.get(8, 'kvout')
    p(f'''
    s_lshl_b32 {sr(s0)}, {sr(s_j)}, 18
    s_lshl_b32 {sr(s1)}, {sr(s_w)}, 16
    s_add_u32 {sr(s0)}, {sr(s0)}, {sr(s1)}
    s_lshl_b32 {sr(s1)}, {sr(s_t64)}, 7
    s_sub_u32 {sr(s0)}, {sr(s0)}, {sr(s1)}
    s_add_u32 {sr(s0)}, {sr(s0)}, {WS_KVT + 2*1984}
    v_lshlrev_b32 {vr(vt0)}, 4, {vr(vt0)}
    v_lshl_add_u32 {vr(vt0)}, {vr(vR8)}, 13, {vr(vt0)}
    ''')
    p.wait(tv)
    for ch in range(2):
        un = (lambda d, s_: f'v_lshlrev_b32 {vr(d)}, 16, {vr(s_)}') if ch == 0 else (lambda d, s_: f'v_and_b32 {vr(d)}, 0xffff0000, {vr(s_)}')
        for t in range(4):
            src = vSH + 2*ch + t//2
            p(f'v_lshlrev_b32 {vr(tap+t)}, 16, {vr(src)}' if t % 2 == 0 else f'v_and_b32 {vr(tap+t)}, 0xffff0000, {vr(src)}')
        for i in range(11): p(un(kk+i, vKk+i))
        for i in range(8): p(f'v_mul_f32 {vr(ac+i)}, {vr(tap+3)}, {vr(kk+i)}')
        for t in (2, 1, 0):
            for i in range(8): p(f'v_fmac_f32 {vr(ac+i)}, {vr(tap+t)}, {vr(kk+i+3-t)}')
        for i in range(8): p(un(kk+i, vVv+i))
        for i in range(8): p(f'v_mul_f32 {vr(ac+i)}, {vr(ac+i)}, {vr(kk+i)}')
        for e in range(4): p(f'v_cvt_pk_bf16_f32 {vr(o+4*ch+e)}, {vr(ac+7-2*e)}, {vr(ac+6-2*e)}')
        if ch == 1: p(f's_add_u32 {sr(s0)}, {sr(s0)}, 4096')
        p(f'buffer_store_dwordx4 {vr(o+4*ch,4)}, {vr(vt0)}, {sr(sWK,4)}, {sr(s0)} offen sc1')
    for r, n in ((vKk,11),(vVv,8),(vA,1),(tap,4),(kk,11),(ac,8),(o,8)): V.free(r, n)
p0(P)
V.free(vSH, 4)

def gather(p):
    g = V.get(28, 'gath'); va = V.get(1, 'gaddr'); an = V.get(1, 'and'); orr = V.get(1, 'or')
    p(f'''
    v_and_b32 {vr(vt0)}, 31, v0
    v_lshlrev_b32 {vr(vt0)}, 4, {vr(vt0)}
    v_lshrrev_b32 {vr(vt1)}, 5, v0
    v_mul_u32_u24 {vr(vt1)}, {7*2048}, {vr(vt1)}
    v_add_u32 {vr(va)}, {vr(vt0)}, {vr(vt1)}
    s_mov_b32 {sr(s_cnt)}, 0
    ''')
    l0, l1 = label('gath'), label('gathok')
    p(f'{l0}:')
    for i in range(7):
        p(f's_add_u32 {sr(s0)}, {sr(s_stb)}, {i*2048}')
        p(f'buffer_load_dwordx4 {vr(g+4*i,4)}, {vr(va)}, {sr(sWK,4)}, {sr(s0)} offen sc1')
    p.waitall(vm=True, lgkm=False)
    p(f'v_and_b32 {vr(an)}, {vr(g+1)}, {vr(g+3)}')
    p(f'v_or_b32 {vr(orr)}, {vr(g+1)}, {vr(g+3)}')
    for i in range(1, 7):
        p(f'v_bitop3_b32 {vr(an)}, {vr(an)}, {vr(g+4*i+1)}, {vr(g+4*i+3)} bitop3:0x80')
        p(f'v_or3_b32 {vr(orr)}, {vr(orr)}, {vr(g+4*i+1)}, {vr(g+4*i+3)}')
    p(f'v_xor_b32 {vr(an)}, {sr(s_tag)}, {vr(an)}')
    p(f'v_xor_b32 {vr(orr)}, {sr(s_tag)}, {vr(orr)}')
    p(f'v_or_b32 {vr(an)}, {vr(an)}, {vr(orr)}')
    p(f'v_cmp_ne_u32 vcc, 0, {vr(an)}')
    p(f's_cbranch_vccz {l1}')
    p(f's_add_u32 {sr(s_cnt)}, {sr(s_cnt)}, 1')
    p(f's_cmp_lt_u32 {sr(s_cnt)}, 20000')
    p(f's_cbranch_scc1 {l0}')
    p(f'{l1}:')
    for (a, b) in ((0,1),(2,3),(4,5),(0,6),(2,4),(0,2)):
        p(f'v_add_f32 {vr(g+4*a)}, {vr(g+4*a)}, {vr(g+4*b)}')
        p(f'v_add_f32 {vr(g+4*a+2)}, {vr(g+4*a+2)}, {vr(g+4*b+2)}')
    p(f'v_mov_b32 {vr(g+1)}, {vr(g)}')
    p(f'v_mov_b32 {vr(g+3)}, {vr(g+2)}')
    p(f'v_permlane32_swap_b32 {vr(g)}, {vr(g+1)}')
    p(f'v_permlane32_swap_b32 {vr(g+2)}, {vr(g+3)}')
    p(f'''
    v_add_f32 {vr(g)}, {vr(g)}, {vr(g+1)}
    v_add_f32 {vr(g+2)}, {vr(g+2)}, {vr(g+3)}
    v_mul_f32 {vr(g)}, {f32(1/896)}, {vr(g)}
    v_mul_f32 {vr(g+2)}, {f32(1/896)}, {vr(g+2)}
    v_fma_f32 {vr(g+2)}, -{vr(g)}, {vr(g)}, {vr(g+2)}
    v_max_f32 {vr(g+2)}, 0, {vr(g+2)}
    v_add_f32 {vr(g+2)}, {f32(1e-5)}, {vr(g+2)}
    v_rsq_f32 {vr(g+2)}, {vr(g+2)}
    s_lshl_b32 {sr(s0)}, {sr(s_w)}, 8
    s_add_u32 {sr(s0)}, {sr(s0)}, {L_STAT}
    v_mul_f32 {vr(g)}, {vr(g)}, {vr(g+2)}
    v_cmp_gt_u32 vcc, 32, v0
    v_lshl_add_u32 {vr(vt0)}, v0, 2, {sr(s0)}
    v_cndmask_b32 {vr(g)}, {vr(g)}, {vr(g+2)}, vcc
    ''')
    tw = p(f'ds_write_b32 {vr(vt0)}, {vr(g)}', T('sw'))
    p(f'v_lshrrev_b32 {vr(vt1)}, 4, v0')
    p(f'v_lshl_add_u32 {vr(vt1)}, {vr(vt1)}, 4, {sr(s0)}')
    p.wait(tw)
    for a in range(2):
        p(f'ds_read_b128 {vr(g+4+8*a,4)}, {vr(vt1)} offset:{64*a}')
        tr = p(f'ds_read_b128 {vr(g+8+8*a,4)}, {vr(vt1)} offset:{128+64*a}', T('sr'))
    p(f'''
    s_lshl_b32 {sr(s0)}, {sr(s_jf)}, 18
    s_lshl_b32 {sr(s1)}, {sr(s_tb)}, 12
    s_add_u32 {sr(s0)}, {sr(s0)}, {sr(s1)}
    s_lshl_b32 {sr(s1)}, {sr(s_w)}, 10
    s_add_u32 {sr(s0)}, {sr(s0)}, {sr(s1)}
    s_add_u32 {sr(s0)}, {sr(s0)}, {WS_Z2}
    ''')
    p.wait(tr)
    o = V.get(16, 'z2out')
    for nt in range(4):
        for a in range(2):
            for h in range(2):
                p(f'v_pk_fma_f32 {vr(z(a,nt,2*h),2)}, {vr(z(a,nt,2*h),2)}, {vr(g+4+8*a+2*h,2)}, {vr(g+8+8*a+2*h,2)} neg_lo:[0,0,1] neg_hi:[0,0,1]')
        for a in range(2):
            for h in range(2):
                p(f'v_cvt_pk_bf16_f32 {vr(o+4*nt+2*a+h)}, {vr(z(a,nt,2*h))}, {vr(z(a,nt,2*h+1))}')
        t = p(f'buffer_store_dwordx4 {vr(o+4*nt,4)}, {vr(vL16)}, {sr(sWK,4)}, {sr(s0)} offen sc1', T('z2st'))
        if nt < 3: p(f's_add_u32 {sr(s0)}, {sr(s0)}, 65536')
    V.free(g, 28); V.free(va, 1); V.free(an, 1); V.free(orr, 1); V.free(o, 16)
    return t
z2st = gather(P)
stamp()

P(f'''
s_cmp_eq_u32 {sr(s_w)}, 0
s_cselect_b32 {sr(s0)}, 0, 0x40000000
v_cmp_gt_u32 vcc, 8, v0
v_mov_b32 {vr(vt0)}, 0x40000000
v_cndmask_b32 {vr(vt0)}, {vr(vt0)}, {vr(vL16)}, vcc
v_add_u32 {vr(vFL)}, {sr(s0)}, {vr(vt0)}
''')
P(f'v_mov_b32 {vr(vFLW)}, {vr(vt0)}')
for i in range(4): P(f'v_mov_b32 {vr(vTAG+i)}, {sr(s_tag)}')
def flag_wg(p, base):
    p(f's_lshl_b32 {sr(s0)}, {sr(s_lid)}, 7')
    p(f's_add_u32 {sr(s0)}, {sr(s0)}, {base}')
    p(f'buffer_store_dwordx4 {vr(vTAG,4)}, {vr(vFL)}, {sr(sWK,4)}, {sr(s0)} offen sc1')

vZ1 = vZ
vWF = V.get(32, 'wfrags')
gemm7(P, vZ1, False, False)
P.wait(z2st)
P('s_barrier')
flag_wg(P, WS_F1)
stamp()
vH0 = V.get(1, 'h0')
P(f'''
s_lshl_b32 {sr(s0)}, {sr(s_j)}, 6
s_lshl_b32 {sr(s1)}, {sr(s_t64)}, 1
s_add_u32 {sr(s0)}, {sr(s0)}, {sr(s1)}
s_lshl_b32 {sr(s1)}, {sr(s0)}, 1
v_mov_b32 {vr(vt0)}, {sr(s1)}
''')
P(f'global_load_dword {vr(vDD)}, {vr(vt0)}, {sr(sD,2)}', 'ssmD')
P(f'''
s_lshr_b32 {sr(s1)}, {sr(s_w)}, 1
s_add_u32 {sr(s0)}, {sr(s0)}, {sr(s1)}
s_lshl_b32 {sr(s0)}, {sr(s0)}, 12
v_mov_b32 {vr(vt0)}, 0
''')
P(f'buffer_load_ushort {vr(vH0)}, {vr(vt0)}, {sr(sHK,4)}, {sr(s0)} offen', 'h0')
P(f'''
s_and_b32 {sr(s1)}, {sr(s_w)}, 1
s_lshl_b32 {sr(s1)}, {sr(s1)}, 1
v_add_u32 {vr(vt1)}, {sr(s1)}, {vr(vL16)}
s_mul_i32 {sr(s2_)}, {sr(s_w)}, {HSTR}
''')
for i in range(4):
    htag = dma(P, vt1, sHK, sr(s0), s2_, L_HC + 32 + i*1024)
    if i < 3: P(f's_add_u32 {sr(s0)}, {sr(s0)}, 1024')

for k2 in range(2):
    for i in range(4):
        P(f'v_cndmask_b32 {vr(vQ+4*k2+i)}, {vr(xf(k2,0)+i)}, {vr(xf(k2,1)+i)}, {sr(sKHM,2)}')
P(f'v_lshrrev_b32 {vr(vt0)}, 4, v0')
P(f'v_lshlrev_b32 {vr(vt0)}, 3, {vr(vt0)}')
P(f'v_add_u32 {vr(vt0)}, {L_GATE}, {vr(vt0)}')
lk1, lk2 = label('gate1'), label('gatedone')
P(f's_cmp_eq_u32 {sr(s_kh)}, 1')
P(f's_cbranch_scc1 {lk1}')
for a in range(2):
    if a == 1: P(f'{lk1}:')
    for half in range(2):
        for ks in range(7):
            for h in range(2):
                P(f'ds_read_b64 {vr(vWF+4*ks+2*h,2)}, {vr(vt0)} offset:{(7*half+ks)*64+32*h}')
        P.waitall(vm=False)
        for ks in range(7):
            P(f'v_mfma_f32_16x16x32_bf16 {vr(vGT,4)}, {vr(vWF+4*ks,4)}, {vr(xf(7*half+ks,a),4)}, {"0" if half+ks == 0 else vr(vGT,4)}')
    P('s_nop 7')
    if a == 0: P(f's_branch {lk2}')
P(f'{lk2}:')
P(f'''
v_mul_f32 {vr(vGT)}, {f32(-1.4426950408889634)}, {vr(vGT)}
v_exp_f32 {vr(vGT)}, {vr(vGT)}
v_add_f32 {vr(vGT)}, 1.0, {vr(vGT)}
v_rcp_f32 {vr(vGT)}, {vr(vGT)}
v_lshlrev_b32 {vr(vBS)}, 16, {vr(vBS)}
v_lshlrev_b32 {vr(vBS+1)}, 16, {vr(vBS+1)}
v_sub_f32 {vr(vGT+1)}, 1.0, {vr(vGT)}
''')
V.free(vGT+2, 2)
V.free(vX, 112); V.free(vWF, 32)
gelu(P, vZ1, 32)
V.free(vK1, 2)

P(f'''
v_lshlrev_b32 {vr(vt0)}, 12, {vr(vR8)}
v_add_u32 {vr(vXE)}, {vr(vt0)}, {vr(vUE)}
v_add_u32 {vr(vXO)}, {vr(vt0)}, {vr(vUO)}
v_add_u32 {vr(vXO)}, {8*4096}, {vr(vXO)}
s_lshl_b32 {sr(s0)}, {sr(s_tb)}, 19
s_lshl_b32 {sr(s1)}, {sr(s_kh)}, 11
s_add_u32 {sr(s0)}, {sr(s0)}, {sr(s1)}
s_lshl_b32 {sr(s1)}, {sr(s_w)}, 9
s_add_u32 {sr(s_row)}, {sr(s0)}, {sr(s1)}
''')
s_tile = S.get(4, 'tileoff', align=1)
for t2 in range(4):
    P(f's_add_u32 {sr(s0)}, {sr(s_w)}, {t2}')
    P(f's_and_b32 {sr(s0)}, {sr(s0)}, 3')
    P(f's_lshl_b32 {sr(s0)}, {sr(s0)}, 17')
    P(f's_add_u32 {sr(s_tile+t2)}, {sr(s0)}, {sr(s_row)}')
NU = 10
units = [(kc, tau) for kc in range(4) for tau in range(8)]
utag = {}
def issue_unit(p, u):
    kc, tau = units[u]
    p(f's_add_u32 {sr(s0)}, {sr(s_tile + tau//2)}, {(tau%2)*65536 + kc*128}')
    dma(p, vXE, sWS, sr(s0), s_xs, (u % NU)*2048)
    utag[u] = dma(p, vXO, sWS, sr(s0), s_xs, (u % NU)*2048 + 1024)
for u in range(NU): issue_unit(P, u)
prev = None
for u in range(32):
    kc, tau = units[u]
    P.wait(utag[u])
    for k2 in range(2):
        for h in range(2):
            t = P(f'ds_read_b64 {ar(((2*kc+k2)*8+tau)*4+2*h,2)}, {vr(vXR+2*k2+h)} offset:{(u % NU)*2048}', T('slab'))
    if prev is not None and u - 1 + NU < 32:
        P.wait(prev); issue_unit(P, u - 1 + NU)
    prev = t
S.free(s_tile, 4)
P.wait('h0', 'ssmD', htag)
P(f'''
s_and_b32 {sr(s1)}, {sr(s_w)}, 1
s_mul_i32 {sr(s1)}, {sr(s1)}, 7
s_cmp_eq_u32 {sr(s1)}, 0
s_cselect_b32 {sr(s1)}, 64, {sr(s1)}
v_lshlrev_b32 {vr(vH0)}, 16, {vr(vH0)}
v_cmp_eq_u32 vcc, {sr(s1)}, v0
s_mul_i32 {sr(s2_)}, {sr(s_w)}, {HSTR}
s_add_u32 {sr(s2_)}, {sr(s2_)}, {L_HC}
v_cndmask_b32 {vr(vH0)}, 0, {vr(vH0)}, vcc
v_lshl_add_u32 {vr(vt0)}, v0, 2, {sr(s2_)}
s_mov_b64 exec, 0xff
ds_write_b32 {vr(vt0)}, {vr(vH0)}
s_mov_b64 exec, -1
''')
V.free(vH0, 1)
P.waitall(vm=False)
P('s_barrier')
stamp()
for r in (vXE, vXO, vUE, vUO): V.free(r, 1)
V.free(vXR, 4)

P(f'''
v_and_b32 {vr(vt0)}, 31, v0
s_lshl_b32 {sr(s0)}, {sr(s_j)}, 12
v_lshl_add_u32 {vr(vCOL)}, {vr(vt0)}, 7, {sr(s0)}
s_mov_b32 {sr(s1)}, {WS_F1}
''')
poll(P, vCOL, sr(s1), vt0)
stamp()
vACC = V.get(64, 'acc'); vRING = V.get(64, 'ring'); vSUM = V.get(16, 'sums')
vRW = V.get(3, 'redw', align=1); vRR = V.get(1, 'redr'); vU = V.get(8, 'u')
s_z = S.get(2, 'zbase', align=1); s_part = S.get(2, 'partbase', align=1); s_wo = S.get(2, 'wo', align=1); s_fl = S.get(2, 'flw', align=1)
P(f'''
s_lshl_b32 {sr(s0)}, {sr(s_kh)}, 15
s_lshl_b32 {sr(s1)}, {sr(s_w)}, 13
s_add_u32 {sr(s0)}, {sr(s0)}, {sr(s1)}
s_add_u32 {sr(s0)}, {sr(s0)}, {WS_Z2}
s_lshl_b32 {sr(s1)}, {sr(s_jf)}, 18
s_add_u32 {sr(s_z+1)}, {sr(s0)}, {sr(s1)}
s_xor_b32 {sr(s1)}, {sr(s1)}, {1<<18}
s_add_u32 {sr(s_z)}, {sr(s0)}, {sr(s1)}
''')
RING = 16; AHEAD = 13
ztag = {}
def issue_z(p, fi):
    ps, k = fi // 8, fi % 8
    if k % 4 == 0:
        p(f's_add_u32 {sr(s3_)}, {sr(s_z + ps//4)}, {(ps%4)*65536 + k*1024}')
    ztag[fi] = p(f'buffer_load_dwordx4 {vr(vRING+4*(fi%RING),4)}, {vr(vL16)}, {sr(sWK,4)}, {sr(s3_)} offen offset:{(k%4)*1024} sc1', T('z'))
for fi in range(AHEAD): issue_z(P, fi)
P(f'''
s_lshl_b32 {sr(s0)}, {sr(s_lid)}, 2
s_add_u32 {sr(s0)}, {sr(s0)}, {sr(s_w)}
s_lshl_b32 {sr(s_fl)}, {sr(s0)}, 7
s_lshl_b32 {sr(s1)}, {sr(s0)}, 13
s_add_u32 {sr(s_part)}, {sr(s1)}, {WS_PART}
s_xor_b32 {sr(s0)}, {sr(s0)}, 4
s_lshl_b32 {sr(s_fl+1)}, {sr(s0)}, 7
s_lshl_b32 {sr(s1)}, {sr(s0)}, 13
s_add_u32 {sr(s_part+1)}, {sr(s1)}, {WS_PART}
s_mul_i32 {sr(s0)}, {sr(s_w)}, 6144
s_add_u32 {sr(s0)}, {sr(s0)}, {L_RED}
v_add_u32 {vr(vRR)}, {sr(s0)}, {vr(vL16)}
v_mul_u32_u24 {vr(vWI)}, 896, {vr(vR8)}
v_add_u32 {vr(vWI)}, {vr(vWI)}, {vr(vUW)}
s_mul_i32 {sr(s0)}, {sr(s_w)}, {8*896}
s_lshl_b32 {sr(s1)}, {sr(s_j)}, 7
s_add_u32 {sr(s_wo)}, {sr(s0)}, {sr(s1)}
s_lshl_b32 {sr(s_wo+1)}, {sr(s_w)}, 10
''')
for t2 in range(1, 4):
    P(f's_add_u32 {sr(s0)}, {sr(s_w)}, {t2}')
    P(f's_and_b32 {sr(s0)}, {sr(s0)}, 3')
    P(f's_mul_i32 {sr(s0)}, {sr(s0)}, 6144')
    P(f's_add_u32 {sr(s0)}, {sr(s0)}, {L_RED + (t2-1)*2048}')
    P(f'v_add_u32 {vr(vRW+t2-1)}, {sr(s0)}, {vr(vL16)}')

vPP = V.get(16, 'partner')
vHO = V.get(8, 'hout')
s_h = S.get(1, 'hbase')
P(f'''
s_lshl_b32 {sr(s0)}, {sr(s_tb)}, 2
s_add_u32 {sr(s0)}, {sr(s0)}, {sr(s_w)}
s_mul_i32 {sr(s0)}, {sr(s0)}, {2*28*1024}
s_lshl_b32 {sr(s1)}, {sr(s_jf)}, 11
s_add_u32 {sr(s0)}, {sr(s0)}, {sr(s1)}
s_add_u32 {sr(s_h)}, {sr(s0)}, {WS_H}
''')
parttag = {}
def reduce_pass(p, ps):
    acc = vACC + 32*(ps % 2)
    vRT = acc + 8
    p('s_barrier')
    for t2 in range(1, 4):
        for a in range(2):
            tw = p(f'ds_write_b128 {vr(vRW+t2-1)}, {vr(acc+(2*t2+a)*4,4)} offset:{a*1024}', T('rw'))
            p('s_nop 0'); p('s_nop 0')
    p('s_nop 0'); p('s_nop 0'); p('s_nop 0')
    p.wait(tw)
    p('s_barrier')
    tr = []
    for i in range(6):
        tr.append(p(f'ds_read_b128 {vr(vRT+4*i,4)}, {vr(vRR)} offset:{i*1024}', T('rr')))
    p('s_nop 0'); p('s_nop 0'); p('s_nop 0')
    dst = vSUM + 8*(ps % 2)
    p.wait(tr[1])
    for i in range(8): p(f'v_add_f32 {vr(dst+i)}, {vr(acc+i)}, {vr(vRT+i)}')
    p.wait(tr[5])
    for i in range(8): p(f'v_add_f32 {vr(vRT+8+i)}, {vr(vRT+8+i)}, {vr(vRT+16+i)}')
    for i in range(8): p(f'v_add_f32 {vr(dst+i)}, {vr(dst+i)}, {vr(vRT+8+i)}')
    if ps < 4:
        p(f's_add_u32 {sr(s2_)}, {sr(s_part)}, {ps*2048}')
        p(f'buffer_store_dwordx4 {vr(dst,4)}, {vr(vL16)}, {sr(sWK,4)}, {sr(s2_)} offen sc1')
        parttag[ps] = p(f'buffer_store_dwordx4 {vr(dst+4,4)}, {vr(vL16)}, {sr(sWK,4)}, {sr(s2_)} offen offset:1024 sc1', T('part'))
def flag_wave(p, base):
    p(f's_add_u32 {sr(s2_)}, {sr(s_fl)}, {base}')
    p(f'buffer_store_dwordx4 {vr(vTAG,4)}, {vr(vFLW)}, {sr(sWK,4)}, {sr(s2_)} offen sc1')
def get_partner(p, base, half):
    p(f's_add_u32 {sr(s1)}, {sr(s_fl+1)}, {base}')
    p(f'v_mov_b32 {vr(vt1)}, 0')
    poll(p, vt1, sr(s1), vt0)
    p(f's_add_u32 {sr(s0)}, {sr(s_part+1)}, {half*4096}')
    for i in range(4):
        t = p(f'buffer_load_dwordx4 {vr(vPP+4*i,4)}, {vr(vL16)}, {sr(sWK,4)}, {sr(s0)} offen offset:{i*1024} sc1', T('pp'))
    return t
def finalize(p, half, tag):
    p.wait(tag)
    for e in range(2):
        sm = vSUM + 8*e
        for a in range(2):
            for r in range(4):
                i = 4*a + r
                p(f'v_add_f32 {vr(sm+i)}, {vr(sm+i)}, {vr(vPP+8*e+i)}')
                p(f'v_add_f32 {vr(sm+i)}, {vr(sm+i)}, {vr(vBS+a)}')
                p(f'v_mul_f32 {vr(sm+i)}, {vr(sm+i)}, {vr(vZ1+(a*4+2*half+e)*4+r)}')
            for h in range(2):
                p(f'v_cvt_pk_bf16_f32 {vr(vHO+4*a+2*e+h)}, {vr(sm+4*a+2*h)}, {vr(sm+4*a+2*h+1)}')
    for a in range(2):
        p(f's_add_u32 {sr(s0)}, {sr(s_h)}, {a*28*1024 + half*1024}')
        t = p(f'buffer_store_dwordx4 {vr(vHO+4*a,4)}, {vr(vL16)}, {sr(sWK,4)}, {sr(s0)} offen sc1', T('hst'))
    return t
wotag = []
def issue_wo(p, ks):
    p(f's_add_u32 {sr(s0)}, {sr(s_wo)}, {ks*32*896}')
    wotag.append(dma(p, vWI, sWO, sr(s0), s_wo+1, ks*4096))

for ps in range(8):
    M = Stream()
    acc = vACC + 32*(ps % 2)
    for k in range(8):
        fi = ps*8 + k
        M.wait(ztag[fi])
        for tau in range(8):
            d = vr(acc + 4*tau, 4)
            M(f'v_mfma_f32_16x16x32_bf16 {d}, {vr(vRING+4*(fi%RING),4)}, {ar((k*8+tau)*4,4)}, {"0" if k == 0 else d}')
            if tau == 1 and fi + AHEAD < 64: issue_z(M, fi + AHEAD)
            if tau == 4 and fi % 2 == 0 and fi // 2 < 28: issue_wo(M, fi // 2)
    F = Stream()
    if ps == 0:
        F(f'''
        s_lshl_b32 {sr(s1)}, {sr(s_lid)}, 13
        s_lshl_b32 {sr(s2_)}, {sr(s_w)}, 11
        s_add_u32 {sr(s1)}, {sr(s1)}, {sr(s2_)}
        s_add_u32 {sr(s1)}, {sr(s1)}, {WS_KVT}
        buffer_load_dwordx4 {vr(vU,4)}, {vr(vL16)}, {sr(sWK,4)}, {sr(s1)} offen sc1
        ''')
        F(f'buffer_load_dwordx4 {vr(vU+4,4)}, {vr(vL16)}, {sr(sWK,4)}, {sr(s1)} offen offset:1024 sc1', 'uld')
    if ps > 0: reduce_pass(F, ps - 1)
    if ps == 3: F.wait(parttag[1]); flag_wave(F, WS_FA)
    if ps == 5: F.wait(parttag[3]); flag_wave(F, WS_FB)
    P.extend(merge(M, F, start=8, end=60))
    if ps == 5:
        ppa = get_partner(P, WS_FA, 0)
    if ps == 6:
        hst = finalize(P, 0, ppa)
        ppb = get_partner(P, WS_FB, 1)
reduce_pass(P, 7)
hst = finalize(P, 1, ppb)
stamp()
for r, n in ((vACC,64),(vRING,64),(vSUM,16),(vRW,3),(vRR,1),(vPP,16),(vHO,8),(vZ,32),(vBS,2),(vWI,1),(vUW,1)): V.free(r, n)

vWR2 = V.get(4, 'wr2', align=1)
for nt in range(4): P(f'v_add_u32 {vr(vWR2+nt)}, 57344, {vr(vWR+nt)}')
P.wait(wotag[-1], 'uld')
P('s_barrier')
P(f'''
s_lshr_b32 {sr(s0)}, {sr(s_w)}, 1
s_mul_i32 {sr(s2_)}, {sr(s0)}, {USTR}
s_add_u32 {sr(s2_)}, {sr(s2_)}, {L_U}
s_and_b32 {sr(s3_)}, {sr(s_w)}, 1
s_lshl_b32 {sr(s1)}, {sr(s3_)}, 11
s_add_u32 {sr(s1)}, {sr(s1)}, {sr(s2_)}
v_add_u32 {vr(vt0)}, {sr(s1)}, {vr(vL16)}
ds_write_b128 {vr(vt0)}, {vr(vU,4)}
ds_write_b128 {vr(vt0)}, {vr(vU+4,4)} offset:1024
s_lshl_b32 {sr(s1)}, {sr(s3_)}, 8
s_add_u32 {sr(s1)}, {sr(s1)}, {sr(s2_)}
v_lshl_add_u32 {vr(vt0)}, v0, 2, {sr(s1)}
v_mov_b32 {vr(vt1)}, 0
ds_write_b32 {vr(vt0)}, {vr(vt1)} offset:4096
''')
V.free(vU, 8)
for ks in range(16):
    if ks < 14: read_w(P, ks, ks*16, vWR, agpr=True)
    else: read_w(P, ks-14, ks*16, vWR2, agpr=True)
vHA = V.get(4, 'haddr', align=1); vUA = V.get(1, 'uaddr')
P(f'''
v_and_b32 {vr(vt0)}, 15, v0
v_lshrrev_b32 {vr(vt1)}, 4, v0
v_lshlrev_b32 {vr(vt1)}, 4, {vr(vt1)}
s_lshl_b32 {sr(s1)}, {sr(s3_)}, 8
s_add_u32 {sr(s2_)}, {sr(s2_)}, {sr(s1)}
s_add_u32 {sr(s2_)}, {sr(s2_)}, 480
v_lshlrev_b32 {vr(vt2)}, 5, {vr(vt0)}
v_sub_u32 {vr(vt2)}, {sr(s2_)}, {vr(vt2)}
v_add_u32 {vr(vUA)}, {vr(vt2)}, {vr(vt1)}
s_mul_i32 {sr(s0)}, {sr(s0)}, {2*HSTR}
s_add_u32 {sr(s0)}, {sr(s0)}, {sr(s1)}
s_add_u32 {sr(s0)}, {sr(s0)}, {L_HC}
v_and_b32 {vr(vt2)}, 1, v0
v_cmp_eq_u32 vcc, 1, {vr(vt2)}
v_mov_b32 {vr(vt2)}, {HSTR}
v_lshl_add_u32 {vr(vt1)}, {vr(vt0)}, 1, {vr(vt1)}
v_cndmask_b32 {vr(vt2)}, {vr(vt2)}, 2, vcc
v_add3_u32 {vr(vHA)}, {vr(vt1)}, {vr(vt2)}, {sr(s0)}
''')
for m in range(1, 4): P(f'v_add_u32 {vr(vHA+m)}, {1024*m}, {vr(vHA)}')
P.wait(hst)
P.waitall(vm=False)
P('s_barrier')
flag_wg(P, WS_FH)
vCA = V.get(32, 'convacc'); vCF = V.get(128, 'convfrags')
def conv_reads(p, t0):
    b = vCF + 64*(t0 % 2)
    tg = {}
    for i in range(8):
        tg['B', i] = p(f'ds_read_b128 {vr(b+32+4*i,4)}, {vr(vUA)} offset:{512*(7-i)+64*t0}', T('cb'))
        o = (i % 2)*128 + t0*16
        p(f'ds_read2_b32 {vr(b+4*i,2)}, {vr(vHA+i//2)} offset0:{o} offset1:{o+1}')
        tg['A', i] = p(f'ds_read2_b32 {vr(b+4*i+2,2)}, {vr(vHA+i//2)} offset0:{o+2} offset1:{o+3}', T('ca'))
    return tg
tg = conv_reads(P, 0)
for t0 in range(4):
    b = vCF + 64*(t0 % 2)
    M = Stream()
    seen = set()
    order = sorted([(t1, qq) for t1 in range(8) for qq in range(8 - t1)], key=lambda x: (max(x), x))
    for (t1, qq) in order:
        M.wait(tg['A', max(t1, qq)])
        n = t1 + qq
        d = vr(vCA + 4*n, 4)
        first = (t0 == 0 and n not in seen); seen.add(n)
        M(f'v_mfma_f32_16x16x32_bf16 {d}, {vr(b+4*t1,4)}, {vr(b+32+4*qq,4)}, {"0" if first else d}')
    if t0 < 3:
        F = Stream(); ntg = conv_reads(F, t0+1)
        P.extend(merge(M, F, start=2, end=30)); tg = ntg
    else:
        P.extend(M)
V.free(vCF, 128)
P(f'''
v_lshrrev_b32 {vr(vt0)}, 4, v0
s_mul_i32 {sr(s0)}, {sr(s_w)}, 10240
v_lshl_add_u32 {vr(vt0)}, {vr(vt0)}, 6, {vr(vL16)}
v_add_u32 {vr(vt0)}, {sr(s0)}, {vr(vt0)}
''')
for n in range(8):
    P(f'ds_write_b128 {vr(vt0)}, {vr(vCA+4*n,4)} offset:{L_CB + n*1280}')
P(f'''
v_and_b32 {vr(vt1)}, 3, v0
v_mul_u32_u24 {vr(vt1)}, 320, {vr(vt1)}
v_lshrrev_b32 {vr(vt2)}, 2, v0
v_lshl_add_u32 {vr(vt1)}, {vr(vt2)}, 4, {vr(vt1)}
s_mul_i32 {sr(s0)}, {sr(s_w)}, 2560
v_add_u32 {vr(vt1)}, {sr(s0)}, {vr(vt1)}
s_lshl_b32 {sr(s0)}, {sr(s_w)}, 10
s_sub_u32 {sr(s0)}, {L_U + 4088 - 512}, {sr(s0)}
v_lshlrev_b32 {vr(vt2)}, 3, v0
v_sub_u32 {vr(vt2)}, {sr(s0)}, {vr(vt2)}
''')
P.waitall(vm=False)
P('s_barrier')
vUU = V.get(8, 'uu'); vYO = V.get(8, 'yout'); vD2 = V.get(2, 'd2', align=1)
for e in range(2):
    for src in range(4):
        P(f'ds_read_b128 {vr(vCA+16*e+4*src,4)}, {vr(vt1)} offset:{L_CB + src*10240 + e*1280}')
    for ch in range(2):
        P(f'ds_read_b64 {vr(vUU+4*e+2*ch,2)}, {vr(vt2)} offset:{ch*USTR + 512*(1-e)}')
P(f'''
v_lshlrev_b32 {vr(vD2)}, 16, {vr(vDD)}
v_and_b32 {vr(vD2+1)}, 0xffff0000, {vr(vDD)}
v_and_b32 {vr(vt0)}, 7, v0
v_lshlrev_b32 {vr(vt0)}, 4, {vr(vt0)}
v_lshl_add_u32 {vr(vt0)}, {vr(vR8)}, 12, {vr(vt0)}
s_lshl_b32 {sr(s0)}, {sr(s_j)}, 18
s_lshl_b32 {sr(s1)}, {sr(s_w)}, 16
s_add_u32 {sr(s0)}, {sr(s0)}, {sr(s1)}
s_lshl_b32 {sr(s1)}, {sr(s_t64)}, 7
s_add_u32 {sr(s0)}, {sr(s0)}, {sr(s1)}
s_add_u32 {sr(s0)}, {sr(s0)}, {WS_Y}
''')
P.waitall(vm=False)
for e in range(2):
    for ch in range(2):
        b = vCA + 16*e + 8*ch
        for r in range(4):
            src = vUU + 4*e + 2*ch + (0 if r >= 2 else 1)
            P(f'v_add_f32 {vr(b+r)}, {vr(b+r)}, {vr(b+4+r)}')
            P(f'v_lshlrev_b32 {vr(b+4+r)}, 16, {vr(src)}' if r % 2 == 1 else f'v_and_b32 {vr(b+4+r)}, 0xffff0000, {vr(src)}')
            P(f'v_fmac_f32 {vr(b+r)}, {vr(vD2+ch)}, {vr(b+4+r)}')
    for r in range(4):
        P(f'v_cvt_pk_bf16_f32 {vr(vYO+4*e+r)}, {vr(vCA+16*e+r)}, {vr(vCA+16*e+8+r)}')
    yst = P(f'buffer_store_dwordx4 {vr(vYO+4*e,4)}, {vr(vt0)}, {sr(sWK,4)}, {sr(s0)} offen sc1', T('yst'))
    if e == 0: P(f's_add_u32 {sr(s0)}, {sr(s0)}, 32768')
for r, n in ((vCA,32),(vUU,8),(vD2,2),(vDD,1),(vHA,4),(vUA,1)): V.free(r, n)
stamp()

P(f'''
v_min_u32 {vr(vt1)}, 13, v0
v_lshrrev_b32 {vr(vt2)}, 1, {vr(vt1)}
v_and_b32 {vr(vt1)}, 1, {vr(vt1)}
v_lshlrev_b32 {vr(vt1)}, 7, {vr(vt1)}
v_lshl_add_u32 {vr(vt1)}, {vr(vt2)}, 12, {vr(vt1)}
s_lshl_b32 {sr(s1)}, {sr(s_tb)}, 8
s_add_u32 {sr(s1)}, {sr(s1)}, {WS_FH}
''')
poll(P, vt1, sr(s1), vt0)
V.free(vYO, 8)
P('s_barrier')
flag_wg(P, WS_FY)
vHF = V.get(112, 'hfrags'); vOA = V.get(16, 'oacc'); vWF = V.get(32, 'wfrags'); vY = V.get(8, 'y')
P(f'''
s_lshl_b32 {sr(s0)}, {sr(s_tb)}, 3
s_lshl_b32 {sr(s1)}, {sr(s_w)}, 1
s_add_u32 {sr(s0)}, {sr(s0)}, {sr(s1)}
s_add_u32 {sr(s3_)}, {sr(s0)}, {sr(s_kh)}
s_mul_i32 {sr(s0)}, {sr(s3_)}, {28*1024}
s_add_u32 {sr(s0)}, {sr(s0)}, {WS_H}
''')
ht = []
for ks in range(28):
    ht.append(P(f'buffer_load_dwordx4 {vr(vHF+4*ks,4)}, {vr(vL16)}, {sr(sWK,4)}, {sr(s0)} offen offset:{(ks%4)*1024} sc1', T('h')))
    if ks % 4 == 3: P(f's_add_u32 {sr(s0)}, {sr(s0)}, 4096')
wt = None
for ks in range(28):
    P.wait(ht[ks])
    nxt = read_w(P, ks+1-14, vWF + 16*((ks+1) % 2), vWR2) if 16 <= ks+1 < 28 else None
    for mt in range(4):
        d = vr(vOA+4*mt, 4)
        if ks < 16: A = ar(ks*16+4*mt, 4)
        else:
            P.wait(wt[mt]); A = vr(vWF + 16*(ks % 2) + 4*mt, 4)
        P(f'v_mfma_f32_16x16x32_bf16 {d}, {A}, {vr(vHF+4*ks,4)}, {"0" if ks == 0 else d}')
    wt = nxt
stamp()
P(f's_mov_b32 {sr(s1)}, {WS_FY}')
poll(P, vCOL, sr(s1), vt0)
P(f'''
s_or_b32 {sr(s0)}, {sr(s_lid)}, {sr(s_w)}
s_cmp_eq_u32 {sr(s0)}, 0
s_cselect_b32 {sr(s0)}, 0, 0x40000000
v_mov_b32 {vr(vt0)}, {sr(s0)}
buffer_store_dword {vr(vTAG)}, {vr(vt0)}, {sr(sWK,4)}, 0 offen
v_and_b32 {vr(vt0)}, 15, v0
v_lshrrev_b32 {vr(vt1)}, 4, v0
v_lshlrev_b32 {vr(vt2)}, 8, {vr(vt1)}
v_lshl_add_u32 {vr(vt2)}, {vr(vt0)}, 2, {vr(vt2)}
s_lshl_b32 {sr(s0)}, {sr(s_j)}, 18
s_lshr_b32 {sr(s1)}, {sr(s3_)}, 1
s_lshl_b32 {sr(s1)}, {sr(s1)}, 12
s_add_u32 {sr(s0)}, {sr(s0)}, {sr(s1)}
s_lshl_b32 {sr(s1)}, {sr(s_kh)}, 6
s_add_u32 {sr(s0)}, {sr(s0)}, {sr(s1)}
s_add_u32 {sr(s0)}, {sr(s0)}, {WS_Y}
''')
yt = []
for mt in range(4):
    for e in range(2):
        yt.append(P(f'buffer_load_dword {vr(vY+2*mt+e)}, {vr(vt2)}, {sr(sWK,4)}, {sr(s0)} offen offset:{(8*mt+e)*128} sc1', T('y')))
P(f'''
v_mul_u32_u24 {vr(vt0)}, 896, {vr(vt0)}
v_and_b32 {vr(vt2)}, 1, {vr(vt1)}
v_lshl_add_u32 {vr(vt0)}, {vr(vt2)}, 5, {vr(vt0)}
v_lshrrev_b32 {vr(vt2)}, 1, {vr(vt1)}
v_lshl_add_u32 {vr(vt0)}, {vr(vt2)}, 4, {vr(vt0)}
s_mul_i32 {sr(s0)}, {sr(s3_)}, {16*896}
s_lshl_b32 {sr(s1)}, {sr(s_j)}, 7
s_add_u32 {sr(s0)}, {sr(s0)}, {sr(s1)}
''')
vQF = V.get(16, 'qf'); vOO = V.get(8, 'out')
for i in range(16):
    src = vQ + i//2
    P(f'v_lshlrev_b32 {vr(vQF+i)}, 16, {vr(src)}' if i % 2 == 0 else f'v_and_b32 {vr(vQF+i)}, 0xffff0000, {vr(src)}')
    P(f'v_mul_f32 {vr(vQF+i)}, {vr(vQF+i)}, {vr(vGT)}')
    P(f'v_mul_f32 {vr(vOA+i)}, {vr(vOA+i)}, {vr(vGT+1)}')
for i2 in range(8):
    P.wait(yt[i2])
    P(f'v_lshlrev_b32 {vr(vt1)}, 16, {vr(vY+i2)}')
    P(f'v_and_b32 {vr(vt2)}, 0xffff0000, {vr(vY+i2)}')
    P(f'v_fmac_f32 {vr(vOA+2*i2)}, {vr(vQF+2*i2)}, {vr(vt1)}')
    P(f'v_fmac_f32 {vr(vOA+2*i2+1)}, {vr(vQF+2*i2+1)}, {vr(vt2)}')
    P(f'v_cvt_pk_bf16_f32 {vr(vOO+i2)}, {vr(vOA+2*i2)}, {vr(vOA+2*i2+1)}')
for m2 in range(2):
    P(f'v_permlane16_swap_b32 {vr(vOO+4*m2)}, {vr(vOO+4*m2+2)}')
    P(f'v_permlane16_swap_b32 {vr(vOO+4*m2+1)}, {vr(vOO+4*m2+3)}')
    P(f'buffer_store_dwordx4 {vr(vOO+4*m2,4)}, {vr(vt0)}, {sr(sO,4)}, {sr(s0)} offen offset:{64*m2}')
if PROFILE:
    P.waitall()
    stamp()
    stamp()
    P(f'''
    s_lshl_b32 {sr(s0)}, s2, 2
    s_add_u32 {sr(s0)}, {sr(s0)}, {sr(s_w)}
    s_lshl_b32 {sr(s0)}, {sr(s0)}, 7
    s_add_u32 {sr(s0)}, {sr(s0)}, {WS_PROF}
    v_lshlrev_b32 {vr(vt0)}, 2, v0
    s_mov_b64 exec, 0xffffffff
    buffer_store_dword {vr(vPROF)}, {vr(vt0)}, {sr(sWK,4)}, {sr(s0)} offen
    ''')
    print('stamps', nstamp[0]-1, file=sys.stderr)
P('L_end:')

lines = fix_hazards(resolve(P))
ref = open(f'cdna_kernels/{NAME}.s.ref').read()
head = [l for l in ref.split('\n') if l.startswith(';') and '@launch' not in l]
out = '\n'.join(head) + f'\n; @launch grid=(224,1,1) block=(256,1,1) lds={LDS}\n'
out += f'''.amdgcn_target "amdgcn-amd-amdhsa--gfx950"
.text
.globl {NAME}_kernel
.p2align 8
.type {NAME}_kernel,@function
{NAME}_kernel:
'''
out += '\n'.join(('' if l.endswith(':') else '    ') + l for l in lines)
out += f'''
    s_endpgm
.section .rodata,"a"
.p2align 6
.amdhsa_kernel {NAME}_kernel
  .amdhsa_next_free_vgpr 512
  .amdhsa_next_free_sgpr 102
  .amdhsa_accum_offset 256
  .amdhsa_group_segment_fixed_size 0
  .amdhsa_kernarg_size 120
  .amdhsa_user_sgpr_count 2
  .amdhsa_user_sgpr_kernarg_segment_ptr 1
  .amdhsa_system_sgpr_workgroup_id_x 1
  .amdhsa_float_denorm_mode_32 3
.end_amdhsa_kernel
'''
open(OUTP, 'w').write(out)
print('instructions', len(lines), 'vgpr peak', V.peak, 'sgpr peak', S.peak, file=sys.stderr)
```

```python
import sys, struct
sys.path.insert(0, 'gen')
from asmlib import *

NAME = 'gated_mix__ssm_conv_h3__mixer_gmlp__prompt'
PROFILE = '--prof' in sys.argv
OUTP = [a for a in sys.argv[1:] if not a.startswith('--')]
OUTP = OUTP[0] if OUTP else f'cdna_kernels/{NAME}.s'

def f32(x): return '0x%08x' % struct.unpack('<I', struct.pack('<f', x))[0]

WS_F1, WS_FH, WS_FY, WS_FA, WS_FB = 0x10000, 0x18000, 0x20000, 0x28000, 0x48000
WS_ST, WS_KVT, WS_Y, WS_Z2, WS_H, WS_PART, WS_PROF = 0x80000, 0x100000, 0x300000, 0x500000, 0x900000, 0xD00000, 0x1400000
WS_SIZE = 0x1500000
L_W = 0; L_XS = 57344; XS_W = 20480; L_KS = 139264; L_VS = L_KS + 9*1040; L_GATE = 157696; L_STAT = 158720
L_RED = 114688; L_HC = 139264; HSTR = 4160; L_U = L_RED; USTR = 4608; L_CB = 0
LDS = 163840
NSLOT = 5

V = Alloc(1, 256)
S = Alloc(4, 100)
P = Stream()

sX, sK, sV, sHK, sWI, sWS, sWO, sO, sWK, sG = [S.get(4, n) for n in 'X K V HK WI WSP WO O WK G'.split()]
sSH, sD, sB = [S.get(2, n) for n in 'SH D B'.split()]
s_w, s_j, s_kh, s_tb, s_jf, s_t64, s_lid, s_tag = [S.get(1, n) for n in 'w j kh tb jf t64 lid tag'.split()]
s0, s1, s2_, s3_ = [S.get(1, f'tmp{i}') for i in range(4)]
sEX = S.get(2, 'execsave'); sKHM = S.get(2, 'khmask'); sC = S.get(2, 'const')
s_cnt = S.get(1, 'pollcnt')
s_kc = S.get(7, 'kchunk', align=1)
s_xs = S.get(1, 'xsbase')
s_row = S.get(1, 'rowoff')
nstamp = [0]
s_st = S.get(2, 'stamps') if PROFILE else None
vPROF = V.get(1, 'prof') if PROFILE else None
def stamp(p=None):
    if PROFILE:
        p = p or P
        i = nstamp[0]; nstamp[0] += 1
        assert i < 32
        if i > 0:
            p.waitall(vm=False)
            p(f'v_writelane_b32 {vr(vPROF)}, {sr(s_st)}, {i-1}')
        p(f's_memrealtime {sr(s_st, 2)}')

lab = [0]
def label(n):
    lab[0] += 1
    return f'L_{n}_{lab[0]}'

def dma(p, vaddr, srd, soff, lds_s, lds_imm, flags='', tag=None):
    if lds_s is None: p(f's_mov_b32 m0, {lds_imm}')
    else: p(f's_add_u32 m0, {sr(lds_s)}, {lds_imm}')
    return p(f'buffer_load_dwordx4 {vr(vaddr)}, {sr(srd,4)}, {soff} offen {flags} lds', tag or T('dma'))

def poll(p, vaddr, soff, vtmp):
    l0, l1 = label('poll'), label('pollok')
    p(f's_mov_b32 {sr(s_cnt)}, 0')
    p(f'{l0}:')
    p(f'buffer_load_dword {vr(vtmp)}, {vr(vaddr)}, {sr(sWK,4)}, {soff} offen sc1')
    p.waitall(vm=True, lgkm=False)
    p(f'v_cmp_ne_u32 vcc, {sr(s_tag)}, {vr(vtmp)}')
    p(f's_cbranch_vccz {l1}')
    p(f's_add_u32 {sr(s_cnt)}, {sr(s_cnt)}, 1')
    p(f's_cmp_lt_u32 {sr(s_cnt)}, 20000')
    p(f's_cbranch_scc1 {l0}')
    p(f'{l1}:')

stamp()
P('s_cmp_ge_u32 s2, 224')
P('s_cbranch_scc1 L_end')
for reg, slot in ((sX,0),(sWI,7),(sK,1),(sV,2),(sSH,3),(sHK,4),(sD,5),(sWS,8),(sB,9),(sWO,10),(sG,11),(sO,12),(sWK,14)):
    P(f's_load_dwordx2 {sr(reg,2)}, s[0:1], {slot*8}')
for reg, size in ((sX,1835008),(sK,1835008),(sV,1835008),(sHK,1835008),(sWI,1605632),(sWS,8388608),(sWO,802816),(sO,1835008),(sWK,WS_SIZE),(sG,896)):
    P(f's_mov_b32 {sr(reg+2)}, {size}')
    P(f's_mov_b32 {sr(reg+3)}, 0x20000')
vL = 0
vt0, vt1, vt2 = [V.get(1, f't{i}') for i in range(3)]
vTAG = V.get(4, 'tag4'); vQ = V.get(8, 'q'); vGT = V.get(4, 'gate'); vZ = V.get(32, 'zz')
vWR = V.get(4, 'wr', align=1); vBS = V.get(2, 'bsp', align=1)
vL16, vCOL, vFL, vFLW, vDD = [V.get(1, n) for n in 'lane16 colflags flagoff flagoffw ssmD'.split()]
P(f'v_lshrrev_b32 {vr(vt0)}, 6, v0')
P(f'v_and_b32 v0, 63, v0')
P(f'v_readfirstlane_b32 {sr(s_w)}, {vr(vt0)}')
if '--nopf' not in sys.argv:
    P(f'''
    s_getpc_b64 {sr(sEX,2)}
    s_lshr_b32 {sr(s0)}, s2, 3
    s_lshl_b32 {sr(s0)}, {sr(s0)}, 2
    s_add_u32 {sr(s0)}, {sr(s0)}, {sr(s_w)}
    s_and_b32 {sr(s0)}, {sr(s0)}, 31
    s_lshl_b32 {sr(s0)}, {sr(s0)}, 10
    v_lshl_add_u32 {vr(vt1)}, v0, 4, {sr(s0)}
    global_load_dwordx4 {vr(vTAG,4)}, {vr(vt1)}, {sr(sEX,2)}
    ''')
P(f'''
s_and_b32 {sr(s_kh)}, s2, 1
s_lshr_b32 {sr(s0)}, s2, 3
s_mul_i32 {sr(s1)}, {sr(s0)}, 37
s_lshr_b32 {sr(s1)}, {sr(s1)}, 8
s_mul_i32 {sr(s2_)}, {sr(s1)}, 7
s_sub_u32 {sr(s_j)}, {sr(s0)}, {sr(s2_)}
s_and_b32 {sr(s0)}, s2, 6
s_lshl_b32 {sr(s0)}, {sr(s0)}, 1
s_add_u32 {sr(s_tb)}, {sr(s0)}, {sr(s1)}
s_lshl_b32 {sr(s0)}, {sr(s_j)}, 1
s_add_u32 {sr(s_jf)}, {sr(s0)}, {sr(s_kh)}
s_lshl_b32 {sr(s0)}, {sr(s_tb)}, 1
s_add_u32 {sr(s_t64)}, {sr(s0)}, {sr(s_kh)}
s_lshl_b32 {sr(s0)}, {sr(s_j)}, 5
s_add_u32 {sr(s_lid)}, {sr(s0)}, {sr(s_t64)}
s_cmp_eq_u32 {sr(s_kh)}, 1
s_cselect_b64 {sr(sKHM,2)}, -1, 0
s_mul_i32 {sr(s_xs)}, {sr(s_w)}, {XS_W}
s_add_u32 {sr(s_xs)}, {sr(s_xs)}, {L_XS}
''')
for cs in range(7):
    P(f's_add_u32 {sr(s0)}, {sr(s_j)}, {cs}')
    P(f's_sub_u32 {sr(s1)}, {sr(s0)}, 7')
    P(f's_cmp_ge_u32 {sr(s0)}, 7')
    P(f's_cselect_b32 {sr(s0)}, {sr(s1)}, {sr(s0)}')
    P(f's_lshl_b32 {sr(s_kc+cs)}, {sr(s0)}, 7')
vWI, vXE, vXO = V.get(1,'wi_src'), V.get(1,'x_even'), V.get(1,'x_odd')
vR8, vUW, vUE, vUO = V.get(1,'row8'), V.get(1,'unit_w'), V.get(1,'unit_e'), V.get(1,'unit_o')
P(f'''
v_lshrrev_b32 {vr(vR8)}, 3, v0
v_and_b32 {vr(vt0)}, 7, v0
v_lshrrev_b32 {vr(vt1)}, 4, v0
v_lshlrev_b32 {vr(vt2)}, 1, {vr(vt1)}
v_xor_b32 {vr(vUW)}, {vr(vt0)}, {vr(vt2)}
v_lshlrev_b32 {vr(vUW)}, 4, {vr(vUW)}
v_xor_b32 {vr(vUE)}, {vr(vt0)}, {vr(vt1)}
v_lshlrev_b32 {vr(vUE)}, 4, {vr(vUE)}
v_xor_b32 {vr(vUO)}, 64, {vr(vUE)}
v_mul_u32_u24 {vr(vWI)}, 3584, {vr(vR8)}
v_add_u32 {vr(vWI)}, {vr(vWI)}, {vr(vUW)}
v_mul_u32_u24 {vr(vt0)}, 896, {vr(vR8)}
v_add_u32 {vr(vXE)}, {vr(vt0)}, {vr(vUE)}
v_add_u32 {vr(vXO)}, {vr(vt0)}, {vr(vUO)}
v_add_u32 {vr(vXO)}, {8*896}, {vr(vXO)}
''')
P.waitall(vm=False)
P(f's_load_dword {sr(s_tag)}, {sr(sWK,2)}, 0', 'epoch')

def issue_w(p, colbyte_s_expr):
    tags = []
    p(f's_lshl_b32 {sr(s2_)}, {sr(s_w)}, 11')
    p(f's_mul_i32 {sr(s1)}, {sr(s_w)}, {16*3584}')
    p(f's_add_u32 {sr(s1)}, {sr(s1)}, {sr(s3_)}')
    for cs in range(7):
        p(f's_mul_i32 {sr(s0)}, {sr(s_kc+cs)}, {64*3584//128}')
        p(f's_add_u32 {sr(s0)}, {sr(s0)}, {sr(s1)}')
        tags.append(dma(p, vWI, sWI, sr(s0), s2_, L_W + cs*8192))
        p(f's_add_u32 {sr(s0)}, {sr(s0)}, {8*3584}')
        tags.append(dma(p, vWI, sWI, sr(s0), s2_, L_W + cs*8192 + 1024))
    return tags
P(f's_lshl_b32 {sr(s3_)}, {sr(s_jf)}, 7')
P(f's_add_u32 {sr(s3_)}, {sr(s3_)}, 1792')
w2tags = issue_w(P, None)
P(f's_lshl_b32 {sr(s0)}, {sr(s_tb)}, 2')
P(f's_add_u32 {sr(s0)}, {sr(s0)}, {sr(s_w)}')
P(f's_mul_i32 {sr(s_row)}, {sr(s0)}, {32*896}')
def issue_x(p, cs):
    slot = cs % NSLOT
    p(f's_add_u32 {sr(s0)}, {sr(s_row)}, {sr(s_kc+cs)}')
    dma(p, vXE, sX, sr(s0), s_xs, slot*4096)
    dma(p, vXO, sX, sr(s0), s_xs, slot*4096 + 1024)
    p(f's_add_u32 {sr(s0)}, {sr(s0)}, {16*896}')
    dma(p, vXE, sX, sr(s0), s_xs, slot*4096 + 2048)
    return dma(p, vXO, sX, sr(s0), s_xs, slot*4096 + 3072)
xtag = {}
for cs in range(NSLOT): xtag[cs] = issue_x(P, cs)

vXR = V.get(4, 'xr', align=1)
P(f'''
v_and_b32 {vr(vt0)}, 15, v0
v_lshrrev_b32 {vr(vt1)}, 5, v0
v_lshrrev_b32 {vr(vt2)}, 1, {vr(vt0)}
v_xor_b32 {vr(vt1)}, {vr(vt1)}, {vr(vt2)}
v_lshlrev_b32 {vr(vt1)}, 4, {vr(vt1)}
v_lshl_add_u32 {vr(vt1)}, {vr(vt0)}, 7, {vr(vt1)}
v_bfe_u32 {vr(vt2)}, v0, 4, 1
v_lshl_add_u32 {vr(vt1)}, {vr(vt2)}, 3, {vr(vt1)}
''')
for c in range(4):
    P(f'v_xor_b32 {vr(vXR+c)}, {32*c}, {vr(vt1)}')
    P(f'v_add_u32 {vr(vXR+c)}, {sr(s_xs)}, {vr(vXR+c)}')
P(f'''
v_lshrrev_b32 {vr(vt0)}, 2, v0
v_bfe_u32 {vr(vt1)}, v0, 3, 2
v_lshlrev_b32 {vr(vt1)}, 5, {vr(vt1)}
v_lshl_add_u32 {vr(vt1)}, {vr(vt0)}, 7, {vr(vt1)}
v_and_b32 {vr(vt2)}, 3, v0
v_lshl_add_u32 {vr(vt1)}, {vr(vt2)}, 3, {vr(vt1)}
''')
for nt in range(4):
    P(f'v_xor_b32 {vr(vWR+nt)}, {32*nt}, {vr(vt1)}')
P(f'v_lshlrev_b32 {vr(vL16)}, 4, v0')
P.wait('epoch')
P(f's_add_u32 {sr(s_tag)}, {sr(s_tag)}, 0x9E3779B9')

vX = V.get(112, 'xfrags')
xf = lambda ks, a: vX + (ks*2 + a)*4
vWF = V.get(32, 'wfrags')
def read_x(p, cs):
    slot = cs % NSLOT
    tg = None
    for k2 in range(2):
        for a in range(2):
            for h in range(2):
                tg = p(f'ds_read_b64 {vr(xf(2*cs+k2, a)+2*h, 2)}, {vr(vXR+2*k2+h)} offset:{slot*4096 + a*2048}', T('xr'))
    return tg
def read_w(p, ks, dst, addr=vWR, agpr=False):
    tg = []
    for nt in range(4):
        for h in range(2):
            d = ar(dst+nt*4+2*h, 2) if agpr else vr(dst+nt*4+2*h, 2)
            t = p(f'ds_read_b64_tr_b16 {d}, {vr(addr+nt)} offset:{ks*4096 + h*2048}', T('wr'))
        tg.append(t)
    return tg

P.wait(w2tags[-1])
P('s_barrier')
stamp()
kvtags = []
def issue_kv(p):
    vKV = V.get(1, 'kv_src'); vKH = V.get(1, 'kh_src')
    p(f'v_and_b32 {vr(vt0)}, 7, v0')
    p(f'v_lshlrev_b32 {vr(vt0)}, 4, {vr(vt0)}')
    p(f'v_mul_u32_u24 {vr(vKV)}, 896, {vr(vR8)}')
    p(f'v_add_u32 {vr(vKV)}, {vr(vKV)}, {vr(vt0)}')
    p(f's_mul_i32 {sr(s1)}, {sr(s_t64)}, {64*896}')
    p(f's_lshl_b32 {sr(s0)}, {sr(s_j)}, 7')
    p(f's_add_u32 {sr(s1)}, {sr(s1)}, {sr(s0)}')
    p(f's_sub_u32 {sr(s0)}, {sr(s1)}, {8*896}')
    p(f'v_add_u32 {vr(vKH)}, {sr(s0)}, {vr(vKV)}')
    p(f's_mul_i32 {sr(s0)}, {sr(s_w)}, {16*896}')
    p(f's_add_u32 {sr(s1)}, {sr(s1)}, {sr(s0)}')
    p(f's_mul_i32 {sr(s2_)}, {sr(s_w)}, 2080')
    dma(p, vKV, sK, sr(s1), s2_, L_KS + 1040)
    dma(p, vKV, sV, sr(s1), s2_, L_VS)
    p(f's_add_u32 {sr(s1)}, {sr(s1)}, {8*896}')
    dma(p, vKV, sK, sr(s1), s2_, L_KS + 2080)
    dma(p, vKV, sV, sr(s1), s2_, L_VS + 1040)
    p(f's_lshl_b32 {sr(s0)}, {sr(s_w)}, 4')
    p(f's_lshl_b64 exec, 0xffff, {sr(s0)}')
    dma(p, vKH, sK, '0', None, L_KS)
    p(f's_mov_b64 exec, -1')
    p(f'v_add_u32 {vr(vt1)}, {sr(s_j)}, {vr(vR8)}')
    p(f'v_subrev_u32 {vr(vt2)}, 7, {vr(vt1)}')
    p(f'v_min_u32 {vr(vt1)}, {vr(vt1)}, {vr(vt2)}')
    p(f'v_lshl_add_u32 {vr(vt1)}, {vr(vt1)}, 7, {vr(vt0)}')
    p(f's_lshl_b64 exec, 0xffff, {sr(s0)}')
    t = dma(p, vt1, sG, '0', None, L_GATE)
    p(f's_mov_b64 exec, -1')
    V.free(vKV, 1); V.free(vKH, 1)
    return t

def gemm7(p, acc, xa, first_reads_x):
    wt = read_w(p, 0, vWF)
    for ks in range(14):
        cs = ks // 2
        if first_reads_x and ks % 2 == 0:
            p.wait(xtag[cs])
            xr = read_x(p, cs)
        cur = vWF + 16*(ks % 2)
        nxt = read_w(p, ks+1, vWF + 16*((ks+1) % 2)) if ks < 13 else None
        if first_reads_x and ks % 2 == 0:
            p.wait(xr)
            if cs + NSLOT < 7: xtag[cs+NSLOT] = issue_x(p, cs + NSLOT)
            if cs == 1: kvtags.append(issue_kv(p))
        for nt in range(4):
            p.wait(wt[nt])
            for a in range(2):
                d = vr(acc + (a*4+nt)*4, 4)
                A, B = vr(xf(ks, a), 4), vr(cur + nt*4, 4)
                if not xa: A, B = B, A
                p(f'v_mfma_f32_16x16x32_bf16 {d}, {A}, {B}, {"0" if ks == 0 else d}')
        wt = nxt
gemm7(P, vZ, True, True)
V.free(vWF, 32)
P('s_barrier')
stamp()
P(f's_lshl_b32 {sr(s3_)}, {sr(s_jf)}, 7')
w1tags = issue_w(P, None)

vSH = V.get(4, 'shift')
P(f'''
s_lshl_b32 {sr(s0)}, {sr(s_j)}, 9
s_lshl_b32 {sr(s1)}, {sr(s_w)}, 7
s_add_u32 {sr(s0)}, {sr(s0)}, {sr(s1)}
v_lshl_add_u32 {vr(vt0)}, {vr(vR8)}, 4, {sr(s0)}
''')
P(f'global_load_dwordx4 {vr(vSH,4)}, {vr(vt0)}, {sr(sSH,2)}', 'shift')
P(f'''
s_lshl_b32 {sr(s0)}, {sr(s_tb)}, 8
s_lshl_b32 {sr(s1)}, {sr(s_w)}, 6
s_add_u32 {sr(s0)}, {sr(s0)}, {sr(s1)}
v_and_b32 {vr(vt0)}, 15, v0
v_lshl_add_u32 {vr(vt0)}, {vr(vt0)}, 1, {sr(s0)}
''')
P(f'global_load_ushort {vr(vBS)}, {vr(vt0)}, {sr(sB,2)}')
P(f'global_load_ushort {vr(vBS+1)}, {vr(vt0)}, {sr(sB,2)} offset:32', 'bsp')

K1, K2 = -2.302208198, -2.302208198*0.044715
vK1 = V.get(2, 'k1')
P(f'v_mov_b32 {vr(vK1)}, {f32(K1)}')
P(f'v_mov_b32 {vr(vK1+1)}, {f32(K1)}')
P(f's_mov_b32 {sr(sC)}, {f32(K2)}')
P(f's_mov_b32 {sr(sC+1)}, {f32(K2)}')
def gelu(p, base, n):
    tmp = V.get(8, 'gelu_tmp')
    for g in range(0, n, 8):
        x = lambda i: vr(base+g+2*i, 2)
        t = lambda i: vr(tmp+2*i, 2)
        for i in range(4): p(f'v_pk_mul_f32 {t(i)}, {x(i)}, {x(i)}')
        for i in range(4): p(f'v_pk_fma_f32 {t(i)}, {t(i)}, {sr(sC,2)}, {vr(vK1,2)}')
        for i in range(4): p(f'v_pk_mul_f32 {t(i)}, {t(i)}, {x(i)}')
        for i in range(8): p(f'v_exp_f32 {vr(tmp+i)}, {vr(tmp+i)}')
        for i in range(4): p(f'v_pk_add_f32 {t(i)}, {t(i)}, 1.0 op_sel_hi:[1,0]')
        for i in range(8): p(f'v_rcp_f32 {vr(tmp+i)}, {vr(tmp+i)}')
        for i in range(4): p(f'v_pk_mul_f32 {x(i)}, {t(i)}, {x(i)}')
    V.free(tmp, 8)
gelu(P, vZ, 32)

vS = V.get(16, 'stat')
z = lambda a, nt, r: vZ + (a*4+nt)*4 + r
for a in range(2):
    for h in range(2):
        P(f'v_pk_add_f32 {vr(vS+a*4+2*h,2)}, {vr(z(a,0,2*h),2)}, {vr(z(a,1,2*h),2)}')
        P(f'v_pk_mul_f32 {vr(vS+8+a*4+2*h,2)}, {vr(z(a,0,2*h),2)}, {vr(z(a,0,2*h),2)}')
for nt in range(1, 4):
    for a in range(2):
        for h in range(2):
            if nt > 1: P(f'v_pk_add_f32 {vr(vS+a*4+2*h,2)}, {vr(vS+a*4+2*h,2)}, {vr(z(a,nt,2*h),2)}')
            P(f'v_pk_fma_f32 {vr(vS+8+a*4+2*h,2)}, {vr(z(a,nt,2*h),2)}, {vr(z(a,nt,2*h),2)}, {vr(vS+8+a*4+2*h,2)}')
vS2 = V.get(12, 'stat2')
for k in range(2):
    for r in range(4):
        P(f'v_add_f32_dpp {vr(vS2+k*4+r)}, {vr(vS+8*k+r)}, {vr(vS+8*k+r)} row_mirror row_mask:0xf bank_mask:0x3')
for k in range(2):
    for r in range(4):
        P(f'v_add_f32_dpp {vr(vS2+k*4+r)}, {vr(vS+8*k+4+r)}, {vr(vS+8*k+4+r)} row_mirror row_mask:0xf bank_mask:0xc')
for k in range(2):
    for r in range(2):
        P(f'v_add_f32_dpp {vr(vS2+8+k*2+r)}, {vr(vS2+4*k+r)}, {vr(vS2+4*k+r)} row_half_mirror row_mask:0xf bank_mask:0x5')
for k in range(2):
    for r in range(2):
        P(f'v_add_f32_dpp {vr(vS2+8+k*2+r)}, {vr(vS2+4*k+2+r)}, {vr(vS2+4*k+2+r)} row_half_mirror row_mask:0xf bank_mask:0xa')
for perm in ('[1,0,3,2]', '[2,3,0,1]'):
    for i in range(4):
        P(f'v_add_f32_dpp {vr(vS2+8+i)}, {vr(vS2+8+i)}, {vr(vS2+8+i)} quad_perm:{perm} row_mask:0xf bank_mask:0xf')
P(f'''
v_and_b32 {vr(vt0)}, 1, v0
v_cmp_eq_u32 vcc, 1, {vr(vt0)}
v_bfe_u32 {vr(vt1)}, v0, 2, 1
v_lshl_add_u32 {vr(vt0)}, {vr(vt1)}, 1, {vr(vt0)}
v_lshrrev_b32 {vr(vt1)}, 4, v0
v_lshl_add_u32 {vr(vt0)}, {vr(vt1)}, 2, {vr(vt0)}
v_bfe_u32 {vr(vt1)}, v0, 3, 1
v_lshl_add_u32 {vr(vt0)}, {vr(vt1)}, 4, {vr(vt0)}
v_lshlrev_b32 {vr(vt0)}, 4, {vr(vt0)}
v_cndmask_b32 {vr(vS)}, {vr(vS2+8)}, {vr(vS2+9)}, vcc
v_cndmask_b32 {vr(vS+2)}, {vr(vS2+10)}, {vr(vS2+11)}, vcc
v_mov_b32 {vr(vS+1)}, {sr(s_tag)}
v_mov_b32 {vr(vS+3)}, {sr(s_tag)}
s_mul_i32 {sr(s0)}, {sr(s_tb)}, {14*2048}
s_lshl_b32 {sr(s1)}, {sr(s_w)}, 9
s_add_u32 {sr(s0)}, {sr(s0)}, {sr(s1)}
s_add_u32 {sr(s3_)}, {sr(s0)}, {WS_ST}
s_lshl_b32 {sr(s1)}, {sr(s_jf)}, 11
s_add_u32 {sr(s0)}, {sr(s3_)}, {sr(s1)}
s_mov_b32 exec_lo, 0x33333333
s_mov_b32 exec_hi, 0x33333333
buffer_store_dwordx4 {vr(vS,4)}, {vr(vt0)}, {sr(sWK,4)}, {sr(s0)} offen sc1
s_mov_b64 exec, -1
''')
s_stb = S.get(1, 'statbase')
P(f's_mov_b32 {sr(s_stb)}, {sr(s3_)}')
V.free(vS2, 12); V.free(vS, 16)
stamp()

P.wait(kvtags[0], w1tags[-1], 'shift', 'bsp')
P('s_barrier')
def p0(p):
    vKk = V.get(11, 'k', align=1); vVv = V.get(8, 'v', align=1); vA = V.get(1, 'kaddr')
    p(f'''
    v_and_b32 {vr(vt0)}, 7, v0
    v_sub_u32 {vr(vt1)}, 7, {vr(vt0)}
    v_mul_u32_u24 {vr(vt1)}, 1040, {vr(vt1)}
    s_lshl_b32 {sr(s0)}, {sr(s_w)}, 5
    s_add_u32 {sr(s0)}, {sr(s0)}, {L_KS}
    v_lshl_add_u32 {vr(vA)}, {vr(vR8)}, 2, {sr(s0)}
    v_add_u32 {vr(vA)}, {vr(vA)}, {vr(vt1)}
    ''')
    for i in range(-3, 8):
        p(f'ds_read_b32 {vr(vKk+i+3)}, {vr(vA)} offset:{1040+128*i if i >= 0 else (8+i)*128}', T('k'))
    for i in range(8):
        tv = p(f'ds_read_b32 {vr(vVv+i)}, {vr(vA)} offset:{L_VS-L_KS+128*i}', T('v'))
    tap = V.get(4, 'tap'); kk = V.get(11, 'kf', align=1); ac = V.get(8, 'ac'); o = V.get(8, 'kvout')
    p(f'''
    s_lshl_b32 {sr(s0)}, {sr(s_j)}, 18
    s_lshl_b32 {sr(s1)}, {sr(s_w)}, 16
    s_add_u32 {sr(s0)}, {sr(s0)}, {sr(s1)}
    s_lshl_b32 {sr(s1)}, {sr(s_t64)}, 7
    s_sub_u32 {sr(s0)}, {sr(s0)}, {sr(s1)}
    s_add_u32 {sr(s0)}, {sr(s0)}, {WS_KVT + 2*1984}
    v_lshlrev_b32 {vr(vt0)}, 4, {vr(vt0)}
    v_lshl_add_u32 {vr(vt0)}, {vr(vR8)}, 13, {vr(vt0)}
    ''')
    p.wait(tv)
    for ch in range(2):
        un = (lambda d, s_: f'v_lshlrev_b32 {vr(d)}, 16, {vr(s_)}') if ch == 0 else (lambda d, s_: f'v_and_b32 {vr(d)}, 0xffff0000, {vr(s_)}')
        for t in range(4):
            src = vSH + 2*ch + t//2
            p(f'v_lshlrev_b32 {vr(tap+t)}, 16, {vr(src)}' if t % 2 == 0 else f'v_and_b32 {vr(tap+t)}, 0xffff0000, {vr(src)}')
        for i in range(11): p(un(kk+i, vKk+i))
        for i in range(8): p(f'v_mul_f32 {vr(ac+i)}, {vr(tap+3)}, {vr(kk+i)}')
        for t in (2, 1, 0):
            for i in range(8): p(f'v_fmac_f32 {vr(ac+i)}, {vr(tap+t)}, {vr(kk+i+3-t)}')
        for i in range(8): p(un(kk+i, vVv+i))
        for i in range(8): p(f'v_mul_f32 {vr(ac+i)}, {vr(ac+i)}, {vr(kk+i)}')
        for e in range(4): p(f'v_cvt_pk_bf16_f32 {vr(o+4*ch+e)}, {vr(ac+7-2*e)}, {vr(ac+6-2*e)}')
        if ch == 1: p(f's_add_u32 {sr(s0)}, {sr(s0)}, 4096')
        p(f'buffer_store_dwordx4 {vr(o+4*ch,4)}, {vr(vt0)}, {sr(sWK,4)}, {sr(s0)} offen sc1')
    for r, n in ((vKk,11),(vVv,8),(vA,1),(tap,4),(kk,11),(ac,8),(o,8)): V.free(r, n)
p0(P)
V.free(vSH, 4)

def gather(p):
    g = V.get(28, 'gath'); va = V.get(1, 'gaddr'); an = V.get(1, 'and'); orr = V.get(1, 'or')
    p(f'''
    v_and_b32 {vr(vt0)}, 31, v0
    v_lshlrev_b32 {vr(vt0)}, 4, {vr(vt0)}
    v_lshrrev_b32 {vr(vt1)}, 5, v0
    v_mul_u32_u24 {vr(vt1)}, {7*2048}, {vr(vt1)}
    v_add_u32 {vr(va)}, {vr(vt0)}, {vr(vt1)}
    s_mov_b32 {sr(s_cnt)}, 0
    ''')
    l0, l1 = label('gath'), label('gathok')
    p(f'{l0}:')
    for i in range(7):
        p(f's_add_u32 {sr(s0)}, {sr(s_stb)}, {i*2048}')
        p(f'buffer_load_dwordx4 {vr(g+4*i,4)}, {vr(va)}, {sr(sWK,4)}, {sr(s0)} offen sc1')
    p.waitall(vm=True, lgkm=False)
    p(f'v_and_b32 {vr(an)}, {vr(g+1)}, {vr(g+3)}')
    p(f'v_or_b32 {vr(orr)}, {vr(g+1)}, {vr(g+3)}')
    for i in range(1, 7):
        p(f'v_bitop3_b32 {vr(an)}, {vr(an)}, {vr(g+4*i+1)}, {vr(g+4*i+3)} bitop3:0x80')
        p(f'v_or3_b32 {vr(orr)}, {vr(orr)}, {vr(g+4*i+1)}, {vr(g+4*i+3)}')
    p(f'v_xor_b32 {vr(an)}, {sr(s_tag)}, {vr(an)}')
    p(f'v_xor_b32 {vr(orr)}, {sr(s_tag)}, {vr(orr)}')
    p(f'v_or_b32 {vr(an)}, {vr(an)}, {vr(orr)}')
    p(f'v_cmp_ne_u32 vcc, 0, {vr(an)}')
    p(f's_cbranch_vccz {l1}')
    p(f's_add_u32 {sr(s_cnt)}, {sr(s_cnt)}, 1')
    p(f's_cmp_lt_u32 {sr(s_cnt)}, 20000')
    p(f's_cbranch_scc1 {l0}')
    p(f'{l1}:')
    for (a, b) in ((0,1),(2,3),(4,5),(0,6),(2,4),(0,2)):
        p(f'v_add_f32 {vr(g+4*a)}, {vr(g+4*a)}, {vr(g+4*b)}')
        p(f'v_add_f32 {vr(g+4*a+2)}, {vr(g+4*a+2)}, {vr(g+4*b+2)}')
    p(f'v_mov_b32 {vr(g+1)}, {vr(g)}')
    p(f'v_mov_b32 {vr(g+3)}, {vr(g+2)}')
    p(f'v_permlane32_swap_b32 {vr(g)}, {vr(g+1)}')
    p(f'v_permlane32_swap_b32 {vr(g+2)}, {vr(g+3)}')
    p(f'''
    v_add_f32 {vr(g)}, {vr(g)}, {vr(g+1)}
    v_add_f32 {vr(g+2)}, {vr(g+2)}, {vr(g+3)}
    v_mul_f32 {vr(g)}, {f32(1/896)}, {vr(g)}
    v_mul_f32 {vr(g+2)}, {f32(1/896)}, {vr(g+2)}
    v_fma_f32 {vr(g+2)}, -{vr(g)}, {vr(g)}, {vr(g+2)}
    v_max_f32 {vr(g+2)}, 0, {vr(g+2)}
    v_add_f32 {vr(g+2)}, {f32(1e-5)}, {vr(g+2)}
    v_rsq_f32 {vr(g+2)}, {vr(g+2)}
    s_lshl_b32 {sr(s0)}, {sr(s_w)}, 8
    s_add_u32 {sr(s0)}, {sr(s0)}, {L_STAT}
    v_mul_f32 {vr(g)}, {vr(g)}, {vr(g+2)}
    v_cmp_gt_u32 vcc, 32, v0
    v_lshl_add_u32 {vr(vt0)}, v0, 2, {sr(s0)}
    v_cndmask_b32 {vr(g)}, {vr(g)}, {vr(g+2)}, vcc
    ''')
    tw = p(f'ds_write_b32 {vr(vt0)}, {vr(g)}', T('sw'))
    p(f'v_lshrrev_b32 {vr(vt1)}, 4, v0')
    p(f'v_lshl_add_u32 {vr(vt1)}, {vr(vt1)}, 4, {sr(s0)}')
    p.wait(tw)
    for a in range(2):
        p(f'ds_read_b128 {vr(g+4+8*a,4)}, {vr(vt1)} offset:{64*a}')
        tr = p(f'ds_read_b128 {vr(g+8+8*a,4)}, {vr(vt1)} offset:{128+64*a}', T('sr'))
    p(f'''
    s_lshl_b32 {sr(s0)}, {sr(s_jf)}, 18
    s_lshl_b32 {sr(s1)}, {sr(s_tb)}, 12
    s_add_u32 {sr(s0)}, {sr(s0)}, {sr(s1)}
    s_lshl_b32 {sr(s1)}, {sr(s_w)}, 10
    s_add_u32 {sr(s0)}, {sr(s0)}, {sr(s1)}
    s_add_u32 {sr(s0)}, {sr(s0)}, {WS_Z2}
    ''')
    p.wait(tr)
    o = V.get(16, 'z2out')
    for nt in range(4):
        for a in range(2):
            for h in range(2):
                p(f'v_pk_fma_f32 {vr(z(a,nt,2*h),2)}, {vr(z(a,nt,2*h),2)}, {vr(g+4+8*a+2*h,2)}, {vr(g+8+8*a+2*h,2)} neg_lo:[0,0,1] neg_hi:[0,0,1]')
        for a in range(2):
            for h in range(2):
                p(f'v_cvt_pk_bf16_f32 {vr(o+4*nt+2*a+h)}, {vr(z(a,nt,2*h))}, {vr(z(a,nt,2*h+1))}')
        t = p(f'buffer_store_dwordx4 {vr(o+4*nt,4)}, {vr(vL16)}, {sr(sWK,4)}, {sr(s0)} offen sc1', T('z2st'))
        if nt < 3: p(f's_add_u32 {sr(s0)}, {sr(s0)}, 65536')
    V.free(g, 28); V.free(va, 1); V.free(an, 1); V.free(orr, 1); V.free(o, 16)
    return t
z2st = gather(P)
stamp()

P(f'''
s_cmp_eq_u32 {sr(s_w)}, 0
s_cselect_b32 {sr(s0)}, 0, 0x40000000
v_cmp_gt_u32 vcc, 8, v0
v_mov_b32 {vr(vt0)}, 0x40000000
v_cndmask_b32 {vr(vt0)}, {vr(vt0)}, {vr(vL16)}, vcc
v_add_u32 {vr(vFL)}, {sr(s0)}, {vr(vt0)}
''')
P(f'v_mov_b32 {vr(vFLW)}, {vr(vt0)}')
for i in range(4): P(f'v_mov_b32 {vr(vTAG+i)}, {sr(s_tag)}')
def flag_wg(p, base):
    p(f's_lshl_b32 {sr(s0)}, {sr(s_lid)}, 7')
    p(f's_add_u32 {sr(s0)}, {sr(s0)}, {base}')
    p(f'buffer_store_dwordx4 {vr(vTAG,4)}, {vr(vFL)}, {sr(sWK,4)}, {sr(s0)} offen sc1')

vZ1 = vZ
vWF = V.get(32, 'wfrags')
gemm7(P, vZ1, False, False)
P.wait(z2st)
P('s_barrier')
flag_wg(P, WS_F1)
stamp()
vH0 = V.get(1, 'h0')
P(f'''
s_lshl_b32 {sr(s0)}, {sr(s_j)}, 6
s_lshl_b32 {sr(s1)}, {sr(s_t64)}, 1
s_add_u32 {sr(s0)}, {sr(s0)}, {sr(s1)}
s_lshl_b32 {sr(s1)}, {sr(s0)}, 1
v_mov_b32 {vr(vt0)}, {sr(s1)}
''')
P(f'global_load_dword {vr(vDD)}, {vr(vt0)}, {sr(sD,2)}', 'ssmD')
P(f'''
s_lshr_b32 {sr(s1)}, {sr(s_w)}, 1
s_add_u32 {sr(s0)}, {sr(s0)}, {sr(s1)}
s_lshl_b32 {sr(s0)}, {sr(s0)}, 12
v_mov_b32 {vr(vt0)}, 0
''')
P(f'buffer_load_ushort {vr(vH0)}, {vr(vt0)}, {sr(sHK,4)}, {sr(s0)} offen', 'h0')
P(f'''
s_and_b32 {sr(s1)}, {sr(s_w)}, 1
s_lshl_b32 {sr(s1)}, {sr(s1)}, 1
v_add_u32 {vr(vt1)}, {sr(s1)}, {vr(vL16)}
s_mul_i32 {sr(s2_)}, {sr(s_w)}, {HSTR}
''')
for i in range(4):
    htag = dma(P, vt1, sHK, sr(s0), s2_, L_HC + 32 + i*1024)
    if i < 3: P(f's_add_u32 {sr(s0)}, {sr(s0)}, 1024')

for k2 in range(2):
    for i in range(4):
        P(f'v_cndmask_b32 {vr(vQ+4*k2+i)}, {vr(xf(k2,0)+i)}, {vr(xf(k2,1)+i)}, {sr(sKHM,2)}')
P(f'v_lshrrev_b32 {vr(vt0)}, 4, v0')
P(f'v_lshlrev_b32 {vr(vt0)}, 3, {vr(vt0)}')
P(f'v_add_u32 {vr(vt0)}, {L_GATE}, {vr(vt0)}')
lk1, lk2 = label('gate1'), label('gatedone')
P(f's_cmp_eq_u32 {sr(s_kh)}, 1')
P(f's_cbranch_scc1 {lk1}')
for a in range(2):
    if a == 1: P(f'{lk1}:')
    for half in range(2):
        for ks in range(7):
            for h in range(2):
                P(f'ds_read_b64 {vr(vWF+4*ks+2*h,2)}, {vr(vt0)} offset:{(7*half+ks)*64+32*h}')
        P.waitall(vm=False)
        for ks in range(7):
            P(f'v_mfma_f32_16x16x32_bf16 {vr(vGT,4)}, {vr(vWF+4*ks,4)}, {vr(xf(7*half+ks,a),4)}, {"0" if half+ks == 0 else vr(vGT,4)}')
    P('s_nop 7')
    if a == 0: P(f's_branch {lk2}')
P(f'{lk2}:')
P(f'''
v_mul_f32 {vr(vGT)}, {f32(-1.4426950408889634)}, {vr(vGT)}
v_exp_f32 {vr(vGT)}, {vr(vGT)}
v_add_f32 {vr(vGT)}, 1.0, {vr(vGT)}
v_rcp_f32 {vr(vGT)}, {vr(vGT)}
v_lshlrev_b32 {vr(vBS)}, 16, {vr(vBS)}
v_lshlrev_b32 {vr(vBS+1)}, 16, {vr(vBS+1)}
v_sub_f32 {vr(vGT+1)}, 1.0, {vr(vGT)}
''')
V.free(vGT+2, 2)
V.free(vX, 112); V.free(vWF, 32)
gelu(P, vZ1, 32)
V.free(vK1, 2)

P(f'''
v_lshlrev_b32 {vr(vt0)}, 12, {vr(vR8)}
v_add_u32 {vr(vXE)}, {vr(vt0)}, {vr(vUE)}
v_add_u32 {vr(vXO)}, {vr(vt0)}, {vr(vUO)}
v_add_u32 {vr(vXO)}, {8*4096}, {vr(vXO)}
s_lshl_b32 {sr(s0)}, {sr(s_tb)}, 19
s_lshl_b32 {sr(s1)}, {sr(s_kh)}, 11
s_add_u32 {sr(s0)}, {sr(s0)}, {sr(s1)}
s_lshl_b32 {sr(s1)}, {sr(s_w)}, 9
s_add_u32 {sr(s_row)}, {sr(s0)}, {sr(s1)}
''')
s_tile = S.get(4, 'tileoff', align=1)
for t2 in range(4):
    P(f's_add_u32 {sr(s0)}, {sr(s_w)}, {t2}')
    P(f's_and_b32 {sr(s0)}, {sr(s0)}, 3')
    P(f's_lshl_b32 {sr(s0)}, {sr(s0)}, 17')
    P(f's_add_u32 {sr(s_tile+t2)}, {sr(s0)}, {sr(s_row)}')
NU = 10
units = [(kc, tau) for kc in range(4) for tau in range(8)]
utag = {}
def issue_unit(p, u):
    kc, tau = units[u]
    p(f's_add_u32 {sr(s0)}, {sr(s_tile + tau//2)}, {(tau%2)*65536 + kc*128}')
    dma(p, vXE, sWS, sr(s0), s_xs, (u % NU)*2048)
    utag[u] = dma(p, vXO, sWS, sr(s0), s_xs, (u % NU)*2048 + 1024)
for u in range(NU): issue_unit(P, u)
prev = None
for u in range(32):
    kc, tau = units[u]
    P.wait(utag[u])
    for k2 in range(2):
        for h in range(2):
            t = P(f'ds_read_b64 {ar(((2*kc+k2)*8+tau)*4+2*h,2)}, {vr(vXR+2*k2+h)} offset:{(u % NU)*2048}', T('slab'))
    if prev is not None and u - 1 + NU < 32:
        P.wait(prev); issue_unit(P, u - 1 + NU)
    prev = t
S.free(s_tile, 4)
P.wait('h0', 'ssmD', htag)
P(f'''
s_and_b32 {sr(s1)}, {sr(s_w)}, 1
s_mul_i32 {sr(s1)}, {sr(s1)}, 7
s_cmp_eq_u32 {sr(s1)}, 0
s_cselect_b32 {sr(s1)}, 64, {sr(s1)}
v_lshlrev_b32 {vr(vH0)}, 16, {vr(vH0)}
v_cmp_eq_u32 vcc, {sr(s1)}, v0
s_mul_i32 {sr(s2_)}, {sr(s_w)}, {HSTR}
s_add_u32 {sr(s2_)}, {sr(s2_)}, {L_HC}
v_cndmask_b32 {vr(vH0)}, 0, {vr(vH0)}, vcc
v_lshl_add_u32 {vr(vt0)}, v0, 2, {sr(s2_)}
s_mov_b64 exec, 0xff
ds_write_b32 {vr(vt0)}, {vr(vH0)}
s_mov_b64 exec, -1
''')
V.free(vH0, 1)
P.waitall(vm=False)
P('s_barrier')
stamp()
for r in (vXE, vXO, vUE, vUO): V.free(r, 1)
V.free(vXR, 4)

P(f'''
v_and_b32 {vr(vt0)}, 31, v0
s_lshl_b32 {sr(s0)}, {sr(s_j)}, 12
v_lshl_add_u32 {vr(vCOL)}, {vr(vt0)}, 7, {sr(s0)}
s_mov_b32 {sr(s1)}, {WS_F1}
''')
poll(P, vCOL, sr(s1), vt0)
stamp()
vACC = V.get(64, 'acc'); vRING = V.get(64, 'ring'); vSUM = V.get(16, 'sums')
vRW = V.get(3, 'redw', align=1); vRR = V.get(1, 'redr'); vU = V.get(8, 'u')
s_z = S.get(2, 'zbase', align=1); s_part = S.get(2, 'partbase', align=1); s_wo = S.get(2, 'wo', align=1); s_fl = S.get(2, 'flw', align=1)
P(f'''
s_lshl_b32 {sr(s0)}, {sr(s_kh)}, 15
s_lshl_b32 {sr(s1)}, {sr(s_w)}, 13
s_add_u32 {sr(s0)}, {sr(s0)}, {sr(s1)}
s_add_u32 {sr(s0)}, {sr(s0)}, {WS_Z2}
s_lshl_b32 {sr(s1)}, {sr(s_jf)}, 18
s_add_u32 {sr(s_z+1)}, {sr(s0)}, {sr(s1)}
s_xor_b32 {sr(s1)}, {sr(s1)}, {1<<18}
s_add_u32 {sr(s_z)}, {sr(s0)}, {sr(s1)}
''')
RING = 16; AHEAD = 13
ztag = {}
def issue_z(p, fi):
    ps, k = fi // 8, fi % 8
    if k % 4 == 0:
        p(f's_add_u32 {sr(s3_)}, {sr(s_z + ps//4)}, {(ps%4)*65536 + k*1024}')
    ztag[fi] = p(f'buffer_load_dwordx4 {vr(vRING+4*(fi%RING),4)}, {vr(vL16)}, {sr(sWK,4)}, {sr(s3_)} offen offset:{(k%4)*1024} sc1', T('z'))
for fi in range(AHEAD): issue_z(P, fi)
P(f'''
s_lshl_b32 {sr(s0)}, {sr(s_lid)}, 2
s_add_u32 {sr(s0)}, {sr(s0)}, {sr(s_w)}
s_lshl_b32 {sr(s_fl)}, {sr(s0)}, 7
s_lshl_b32 {sr(s1)}, {sr(s0)}, 13
s_add_u32 {sr(s_part)}, {sr(s1)}, {WS_PART}
s_xor_b32 {sr(s0)}, {sr(s0)}, 4
s_lshl_b32 {sr(s_fl+1)}, {sr(s0)}, 7
s_lshl_b32 {sr(s1)}, {sr(s0)}, 13
s_add_u32 {sr(s_part+1)}, {sr(s1)}, {WS_PART}
s_mul_i32 {sr(s0)}, {sr(s_w)}, 6144
s_add_u32 {sr(s0)}, {sr(s0)}, {L_RED}
v_add_u32 {vr(vRR)}, {sr(s0)}, {vr(vL16)}
v_mul_u32_u24 {vr(vWI)}, 896, {vr(vR8)}
v_add_u32 {vr(vWI)}, {vr(vWI)}, {vr(vUW)}
s_mul_i32 {sr(s0)}, {sr(s_w)}, {8*896}
s_lshl_b32 {sr(s1)}, {sr(s_j)}, 7
s_add_u32 {sr(s_wo)}, {sr(s0)}, {sr(s1)}
s_lshl_b32 {sr(s_wo+1)}, {sr(s_w)}, 10
''')
for t2 in range(1, 4):
    P(f's_add_u32 {sr(s0)}, {sr(s_w)}, {t2}')
    P(f's_and_b32 {sr(s0)}, {sr(s0)}, 3')
    P(f's_mul_i32 {sr(s0)}, {sr(s0)}, 6144')
    P(f's_add_u32 {sr(s0)}, {sr(s0)}, {L_RED + (t2-1)*2048}')
    P(f'v_add_u32 {vr(vRW+t2-1)}, {sr(s0)}, {vr(vL16)}')

vPP = V.get(16, 'partner')
vHO = V.get(8, 'hout')
s_h = S.get(1, 'hbase')
P(f'''
s_lshl_b32 {sr(s0)}, {sr(s_tb)}, 2
s_add_u32 {sr(s0)}, {sr(s0)}, {sr(s_w)}
s_mul_i32 {sr(s0)}, {sr(s0)}, {2*28*1024}
s_lshl_b32 {sr(s1)}, {sr(s_jf)}, 11
s_add_u32 {sr(s0)}, {sr(s0)}, {sr(s1)}
s_add_u32 {sr(s_h)}, {sr(s0)}, {WS_H}
''')
parttag = {}
def reduce_pass(p, ps):
    acc = vACC + 32*(ps % 2)
    vRT = acc + 8
    p('s_barrier')
    for t2 in range(1, 4):
        for a in range(2):
            tw = p(f'ds_write_b128 {vr(vRW+t2-1)}, {vr(acc+(2*t2+a)*4,4)} offset:{a*1024}', T('rw'))
            p('s_nop 0'); p('s_nop 0')
    p('s_nop 0'); p('s_nop 0'); p('s_nop 0')
    p.wait(tw)
    p('s_barrier')
    tr = []
    for i in range(6):
        tr.append(p(f'ds_read_b128 {vr(vRT+4*i,4)}, {vr(vRR)} offset:{i*1024}', T('rr')))
    p('s_nop 0'); p('s_nop 0'); p('s_nop 0')
    dst = vSUM + 8*(ps % 2)
    p.wait(tr[1])
    for i in range(8): p(f'v_add_f32 {vr(dst+i)}, {vr(acc+i)}, {vr(vRT+i)}')
    p.wait(tr[5])
    for i in range(8): p(f'v_add_f32 {vr(vRT+8+i)}, {vr(vRT+8+i)}, {vr(vRT+16+i)}')
    for i in range(8): p(f'v_add_f32 {vr(dst+i)}, {vr(dst+i)}, {vr(vRT+8+i)}')
    if ps < 4:
        p(f's_add_u32 {sr(s2_)}, {sr(s_part)}, {ps*2048}')
        p(f'buffer_store_dwordx4 {vr(dst,4)}, {vr(vL16)}, {sr(sWK,4)}, {sr(s2_)} offen sc1')
        parttag[ps] = p(f'buffer_store_dwordx4 {vr(dst+4,4)}, {vr(vL16)}, {sr(sWK,4)}, {sr(s2_)} offen offset:1024 sc1', T('part'))
def flag_wave(p, base):
    p(f's_add_u32 {sr(s2_)}, {sr(s_fl)}, {base}')
    p(f'buffer_store_dwordx4 {vr(vTAG,4)}, {vr(vFLW)}, {sr(sWK,4)}, {sr(s2_)} offen sc1')
def get_partner(p, base, half):
    p(f's_add_u32 {sr(s1)}, {sr(s_fl+1)}, {base}')
    p(f'v_mov_b32 {vr(vt1)}, 0')
    poll(p, vt1, sr(s1), vt0)
    p(f's_add_u32 {sr(s0)}, {sr(s_part+1)}, {half*4096}')
    for i in range(4):
        t = p(f'buffer_load_dwordx4 {vr(vPP+4*i,4)}, {vr(vL16)}, {sr(sWK,4)}, {sr(s0)} offen offset:{i*1024} sc1', T('pp'))
    return t
def finalize(p, half, tag):
    p.wait(tag)
    for e in range(2):
        sm = vSUM + 8*e
        for a in range(2):
            for r in range(4):
                i = 4*a + r
                p(f'v_add_f32 {vr(sm+i)}, {vr(sm+i)}, {vr(vPP+8*e+i)}')
                p(f'v_add_f32 {vr(sm+i)}, {vr(sm+i)}, {vr(vBS+a)}')
                p(f'v_mul_f32 {vr(sm+i)}, {vr(sm+i)}, {vr(vZ1+(a*4+2*half+e)*4+r)}')
            for h in range(2):
                p(f'v_cvt_pk_bf16_f32 {vr(vHO+4*a+2*e+h)}, {vr(sm+4*a+2*h)}, {vr(sm+4*a+2*h+1)}')
    for a in range(2):
        p(f's_add_u32 {sr(s0)}, {sr(s_h)}, {a*28*1024 + half*1024}')
        t = p(f'buffer_store_dwordx4 {vr(vHO+4*a,4)}, {vr(vL16)}, {sr(sWK,4)}, {sr(s0)} offen sc1', T('hst'))
    return t
wotag = []
def issue_wo(p, ks):
    p(f's_add_u32 {sr(s0)}, {sr(s_wo)}, {ks*32*896}')
    wotag.append(dma(p, vWI, sWO, sr(s0), s_wo+1, ks*4096))

for ps in range(8):
    M = Stream()
    acc = vACC + 32*(ps % 2)
    for k in range(8):
        fi = ps*8 + k
        M.wait(ztag[fi])
        for tau in range(8):
            d = vr(acc + 4*tau, 4)
            M(f'v_mfma_f32_16x16x32_bf16 {d}, {vr(vRING+4*(fi%RING),4)}, {ar((k*8+tau)*4,4)}, {"0" if k == 0 else d}')
            if tau == 1 and fi + AHEAD < 64: issue_z(M, fi + AHEAD)
            if tau == 4 and fi % 2 == 0 and fi // 2 < 28: issue_wo(M, fi // 2)
    F = Stream()
    if ps == 0:
        F(f'''
        s_lshl_b32 {sr(s1)}, {sr(s_lid)}, 13
        s_lshl_b32 {sr(s2_)}, {sr(s_w)}, 11
        s_add_u32 {sr(s1)}, {sr(s1)}, {sr(s2_)}
        s_add_u32 {sr(s1)}, {sr(s1)}, {WS_KVT}
        buffer_load_dwordx4 {vr(vU,4)}, {vr(vL16)}, {sr(sWK,4)}, {sr(s1)} offen sc1
        ''')
        F(f'buffer_load_dwordx4 {vr(vU+4,4)}, {vr(vL16)}, {sr(sWK,4)}, {sr(s1)} offen offset:1024 sc1', 'uld')
    if ps > 0: reduce_pass(F, ps - 1)
    if ps == 3: F.wait(parttag[1]); flag_wave(F, WS_FA)
    if ps == 5: F.wait(parttag[3]); flag_wave(F, WS_FB)
    P.extend(merge(M, F, start=8, end=60))
    if ps == 5:
        ppa = get_partner(P, WS_FA, 0)
    if ps == 6:
        hst = finalize(P, 0, ppa)
        ppb = get_partner(P, WS_FB, 1)
reduce_pass(P, 7)
hst = finalize(P, 1, ppb)
stamp()
for r, n in ((vACC,64),(vRING,64),(vSUM,16),(vRW,3),(vRR,1),(vPP,16),(vHO,8),(vZ,32),(vBS,2),(vWI,1),(vUW,1)): V.free(r, n)

vWR2 = V.get(4, 'wr2', align=1)
for nt in range(4): P(f'v_add_u32 {vr(vWR2+nt)}, 57344, {vr(vWR+nt)}')
P.wait(wotag[-1], 'uld')
P('s_barrier')
P(f'''
s_lshr_b32 {sr(s0)}, {sr(s_w)}, 1
s_mul_i32 {sr(s2_)}, {sr(s0)}, {USTR}
s_add_u32 {sr(s2_)}, {sr(s2_)}, {L_U}
s_and_b32 {sr(s3_)}, {sr(s_w)}, 1
s_lshl_b32 {sr(s1)}, {sr(s3_)}, 11
s_add_u32 {sr(s1)}, {sr(s1)}, {sr(s2_)}
v_add_u32 {vr(vt0)}, {sr(s1)}, {vr(vL16)}
ds_write_b128 {vr(vt0)}, {vr(vU,4)}
ds_write_b128 {vr(vt0)}, {vr(vU+4,4)} offset:1024
s_lshl_b32 {sr(s1)}, {sr(s3_)}, 8
s_add_u32 {sr(s1)}, {sr(s1)}, {sr(s2_)}
v_lshl_add_u32 {vr(vt0)}, v0, 2, {sr(s1)}
v_mov_b32 {vr(vt1)}, 0
ds_write_b32 {vr(vt0)}, {vr(vt1)} offset:4096
''')
V.free(vU, 8)
for ks in range(16):
    if ks < 14: read_w(P, ks, ks*16, vWR, agpr=True)
    else: read_w(P, ks-14, ks*16, vWR2, agpr=True)
vHA = V.get(4, 'haddr', align=1); vUA = V.get(1, 'uaddr')
P(f'''
v_and_b32 {vr(vt0)}, 15, v0
v_lshrrev_b32 {vr(vt1)}, 4, v0
v_lshlrev_b32 {vr(vt1)}, 4, {vr(vt1)}
s_lshl_b32 {sr(s1)}, {sr(s3_)}, 8
s_add_u32 {sr(s2_)}, {sr(s2_)}, {sr(s1)}
s_add_u32 {sr(s2_)}, {sr(s2_)}, 480
v_lshlrev_b32 {vr(vt2)}, 5, {vr(vt0)}
v_sub_u32 {vr(vt2)}, {sr(s2_)}, {vr(vt2)}
v_add_u32 {vr(vUA)}, {vr(vt2)}, {vr(vt1)}
s_mul_i32 {sr(s0)}, {sr(s0)}, {2*HSTR}
s_add_u32 {sr(s0)}, {sr(s0)}, {sr(s1)}
s_add_u32 {sr(s0)}, {sr(s0)}, {L_HC}
v_and_b32 {vr(vt2)}, 1, v0
v_cmp_eq_u32 vcc, 1, {vr(vt2)}
v_mov_b32 {vr(vt2)}, {HSTR}
v_lshl_add_u32 {vr(vt1)}, {vr(vt0)}, 1, {vr(vt1)}
v_cndmask_b32 {vr(vt2)}, {vr(vt2)}, 2, vcc
v_add3_u32 {vr(vHA)}, {vr(vt1)}, {vr(vt2)}, {sr(s0)}
''')
for m in range(1, 4): P(f'v_add_u32 {vr(vHA+m)}, {1024*m}, {vr(vHA)}')
P.wait(hst)
P.waitall(vm=False)
P('s_barrier')
flag_wg(P, WS_FH)
vCA = V.get(32, 'convacc'); vCF = V.get(128, 'convfrags')
def conv_reads(p, t0):
    b = vCF + 64*(t0 % 2)
    tg = {}
    for i in range(8):
        tg['B', i] = p(f'ds_read_b128 {vr(b+32+4*i,4)}, {vr(vUA)} offset:{512*(7-i)+64*t0}', T('cb'))
        o = (i % 2)*128 + t0*16
        p(f'ds_read2_b32 {vr(b+4*i,2)}, {vr(vHA+i//2)} offset0:{o} offset1:{o+1}')
        tg['A', i] = p(f'ds_read2_b32 {vr(b+4*i+2,2)}, {vr(vHA+i//2)} offset0:{o+2} offset1:{o+3}', T('ca'))
    return tg
tg = conv_reads(P, 0)
for t0 in range(4):
    b = vCF + 64*(t0 % 2)
    M = Stream()
    seen = set()
    order = sorted([(t1, qq) for t1 in range(8) for qq in range(8 - t1)], key=lambda x: (max(x), x))
    for (t1, qq) in order:
        M.wait(tg['A', max(t1, qq)])
        n = t1 + qq
        d = vr(vCA + 4*n, 4)
        first = (t0 == 0 and n not in seen); seen.add(n)
        M(f'v_mfma_f32_16x16x32_bf16 {d}, {vr(b+4*t1,4)}, {vr(b+32+4*qq,4)}, {"0" if first else d}')
    if t0 < 3:
        F = Stream(); ntg = conv_reads(F, t0+1)
        P.extend(merge(M, F, start=2, end=30)); tg = ntg
    else:
        P.extend(M)
V.free(vCF, 128)
P(f'''
v_lshrrev_b32 {vr(vt0)}, 4, v0
s_mul_i32 {sr(s0)}, {sr(s_w)}, 10240
v_lshl_add_u32 {vr(vt0)}, {vr(vt0)}, 6, {vr(vL16)}
v_add_u32 {vr(vt0)}, {sr(s0)}, {vr(vt0)}
''')
for n in range(8):
    P(f'ds_write_b128 {vr(vt0)}, {vr(vCA+4*n,4)} offset:{L_CB + n*1280}')
P(f'''
v_and_b32 {vr(vt1)}, 3, v0
v_mul_u32_u24 {vr(vt1)}, 320, {vr(vt1)}
v_lshrrev_b32 {vr(vt2)}, 2, v0
v_lshl_add_u32 {vr(vt1)}, {vr(vt2)}, 4, {vr(vt1)}
s_mul_i32 {sr(s0)}, {sr(s_w)}, 2560
v_add_u32 {vr(vt1)}, {sr(s0)}, {vr(vt1)}
s_lshl_b32 {sr(s0)}, {sr(s_w)}, 10
s_sub_u32 {sr(s0)}, {L_U + 4088 - 512}, {sr(s0)}
v_lshlrev_b32 {vr(vt2)}, 3, v0
v_sub_u32 {vr(vt2)}, {sr(s0)}, {vr(vt2)}
''')
P.waitall(vm=False)
P('s_barrier')
vUU = V.get(8, 'uu'); vYO = V.get(8, 'yout'); vD2 = V.get(2, 'd2', align=1)
for e in range(2):
    for src in range(4):
        P(f'ds_read_b128 {vr(vCA+16*e+4*src,4)}, {vr(vt1)} offset:{L_CB + src*10240 + e*1280}')
    for ch in range(2):
        P(f'ds_read_b64 {vr(vUU+4*e+2*ch,2)}, {vr(vt2)} offset:{ch*USTR + 512*(1-e)}')
P(f'''
v_lshlrev_b32 {vr(vD2)}, 16, {vr(vDD)}
v_and_b32 {vr(vD2+1)}, 0xffff0000, {vr(vDD)}
v_and_b32 {vr(vt0)}, 7, v0
v_lshlrev_b32 {vr(vt0)}, 4, {vr(vt0)}
v_lshl_add_u32 {vr(vt0)}, {vr(vR8)}, 12, {vr(vt0)}
s_lshl_b32 {sr(s0)}, {sr(s_j)}, 18
s_lshl_b32 {sr(s1)}, {sr(s_w)}, 16
s_add_u32 {sr(s0)}, {sr(s0)}, {sr(s1)}
s_lshl_b32 {sr(s1)}, {sr(s_t64)}, 7
s_add_u32 {sr(s0)}, {sr(s0)}, {sr(s1)}
s_add_u32 {sr(s0)}, {sr(s0)}, {WS_Y}
''')
P.waitall(vm=False)
for e in range(2):
    for ch in range(2):
        b = vCA + 16*e + 8*ch
        for r in range(4):
            src = vUU + 4*e + 2*ch + (0 if r >= 2 else 1)
            P(f'v_add_f32 {vr(b+r)}, {vr(b+r)}, {vr(b+4+r)}')
            P(f'v_lshlrev_b32 {vr(b+4+r)}, 16, {vr(src)}' if r % 2 == 1 else f'v_and_b32 {vr(b+4+r)}, 0xffff0000, {vr(src)}')
            P(f'v_fmac_f32 {vr(b+r)}, {vr(vD2+ch)}, {vr(b+4+r)}')
    for r in range(4):
        P(f'v_cvt_pk_bf16_f32 {vr(vYO+4*e+r)}, {vr(vCA+16*e+r)}, {vr(vCA+16*e+8+r)}')
    yst = P(f'buffer_store_dwordx4 {vr(vYO+4*e,4)}, {vr(vt0)}, {sr(sWK,4)}, {sr(s0)} offen sc1', T('yst'))
    if e == 0: P(f's_add_u32 {sr(s0)}, {sr(s0)}, 32768')
for r, n in ((vCA,32),(vUU,8),(vD2,2),(vDD,1),(vHA,4),(vUA,1)): V.free(r, n)
stamp()

P(f'''
v_min_u32 {vr(vt1)}, 13, v0
v_lshrrev_b32 {vr(vt2)}, 1, {vr(vt1)}
v_and_b32 {vr(vt1)}, 1, {vr(vt1)}
v_lshlrev_b32 {vr(vt1)}, 7, {vr(vt1)}
v_lshl_add_u32 {vr(vt1)}, {vr(vt2)}, 12, {vr(vt1)}
s_lshl_b32 {sr(s1)}, {sr(s_tb)}, 8
s_add_u32 {sr(s1)}, {sr(s1)}, {WS_FH}
''')
poll(P, vt1, sr(s1), vt0)
V.free(vYO, 8)
P('s_barrier')
flag_wg(P, WS_FY)
vHF = V.get(112, 'hfrags'); vOA = V.get(16, 'oacc'); vWF = V.get(32, 'wfrags'); vY = V.get(8, 'y')
P(f'''
s_lshl_b32 {sr(s0)}, {sr(s_tb)}, 3
s_lshl_b32 {sr(s1)}, {sr(s_w)}, 1
s_add_u32 {sr(s0)}, {sr(s0)}, {sr(s1)}
s_add_u32 {sr(s3_)}, {sr(s0)}, {sr(s_kh)}
s_mul_i32 {sr(s0)}, {sr(s3_)}, {28*1024}
s_add_u32 {sr(s0)}, {sr(s0)}, {WS_H}
''')
ht = []
for ks in range(28):
    ht.append(P(f'buffer_load_dwordx4 {vr(vHF+4*ks,4)}, {vr(vL16)}, {sr(sWK,4)}, {sr(s0)} offen offset:{(ks%4)*1024} sc1', T('h')))
    if ks % 4 == 3: P(f's_add_u32 {sr(s0)}, {sr(s0)}, 4096')
wt = None
for ks in range(28):
    P.wait(ht[ks])
    nxt = read_w(P, ks+1-14, vWF + 16*((ks+1) % 2), vWR2) if 16 <= ks+1 < 28 else None
    for mt in range(4):
        d = vr(vOA+4*mt, 4)
        if ks < 16: A = ar(ks*16+4*mt, 4)
        else:
            P.wait(wt[mt]); A = vr(vWF + 16*(ks % 2) + 4*mt, 4)
        P(f'v_mfma_f32_16x16x32_bf16 {d}, {A}, {vr(vHF+4*ks,4)}, {"0" if ks == 0 else d}')
    wt = nxt
stamp()
P(f's_mov_b32 {sr(s1)}, {WS_FY}')
poll(P, vCOL, sr(s1), vt0)
P(f'''
s_or_b32 {sr(s0)}, {sr(s_lid)}, {sr(s_w)}
s_cmp_eq_u32 {sr(s0)}, 0
s_cselect_b32 {sr(s0)}, 0, 0x40000000
v_mov_b32 {vr(vt0)}, {sr(s0)}
buffer_store_dword {vr(vTAG)}, {vr(vt0)}, {sr(sWK,4)}, 0 offen
v_and_b32 {vr(vt0)}, 15, v0
v_lshrrev_b32 {vr(vt1)}, 4, v0
v_lshlrev_b32 {vr(vt2)}, 8, {vr(vt1)}
v_lshl_add_u32 {vr(vt2)}, {vr(vt0)}, 2, {vr(vt2)}
s_lshl_b32 {sr(s0)}, {sr(s_j)}, 18
s_lshr_b32 {sr(s1)}, {sr(s3_)}, 1
s_lshl_b32 {sr(s1)}, {sr(s1)}, 12
s_add_u32 {sr(s0)}, {sr(s0)}, {sr(s1)}
s_lshl_b32 {sr(s1)}, {sr(s_kh)}, 6
s_add_u32 {sr(s0)}, {sr(s0)}, {sr(s1)}
s_add_u32 {sr(s0)}, {sr(s0)}, {WS_Y}
''')
yt = []
for mt in range(4):
    for e in range(2):
        yt.append(P(f'buffer_load_dword {vr(vY+2*mt+e)}, {vr(vt2)}, {sr(sWK,4)}, {sr(s0)} offen offset:{(8*mt+e)*128} sc1', T('y')))
P(f'''
v_mul_u32_u24 {vr(vt0)}, 896, {vr(vt0)}
v_and_b32 {vr(vt2)}, 1, {vr(vt1)}
v_lshl_add_u32 {vr(vt0)}, {vr(vt2)}, 5, {vr(vt0)}
v_lshrrev_b32 {vr(vt2)}, 1, {vr(vt1)}
v_lshl_add_u32 {vr(vt0)}, {vr(vt2)}, 4, {vr(vt0)}
s_mul_i32 {sr(s0)}, {sr(s3_)}, {16*896}
s_lshl_b32 {sr(s1)}, {sr(s_j)}, 7
s_add_u32 {sr(s0)}, {sr(s0)}, {sr(s1)}
''')
vQF = V.get(16, 'qf'); vOO = V.get(8, 'out')
for i in range(16):
    src = vQ + i//2
    P(f'v_lshlrev_b32 {vr(vQF+i)}, 16, {vr(src)}' if i % 2 == 0 else f'v_and_b32 {vr(vQF+i)}, 0xffff0000, {vr(src)}')
    P(f'v_mul_f32 {vr(vQF+i)}, {vr(vQF+i)}, {vr(vGT)}')
    P(f'v_mul_f32 {vr(vOA+i)}, {vr(vOA+i)}, {vr(vGT+1)}')
for i2 in range(8):
    P.wait(yt[i2])
    P(f'v_lshlrev_b32 {vr(vt1)}, 16, {vr(vY+i2)}')
    P(f'v_and_b32 {vr(vt2)}, 0xffff0000, {vr(vY+i2)}')
    P(f'v_fmac_f32 {vr(vOA+2*i2)}, {vr(vQF+2*i2)}, {vr(vt1)}')
    P(f'v_fmac_f32 {vr(vOA+2*i2+1)}, {vr(vQF+2*i2+1)}, {vr(vt2)}')
    P(f'v_cvt_pk_bf16_f32 {vr(vOO+i2)}, {vr(vOA+2*i2)}, {vr(vOA+2*i2+1)}')
for m2 in range(2):
    P(f'v_permlane16_swap_b32 {vr(vOO+4*m2)}, {vr(vOO+4*m2+2)}')
    P(f'v_permlane16_swap_b32 {vr(vOO+4*m2+1)}, {vr(vOO+4*m2+3)}')
    P(f'buffer_store_dwordx4 {vr(vOO+4*m2,4)}, {vr(vt0)}, {sr(sO,4)}, {sr(s0)} offen offset:{64*m2}')
if PROFILE:
    P.waitall()
    stamp()
    stamp()
    P(f'''
    s_lshl_b32 {sr(s0)}, s2, 2
    s_add_u32 {sr(s0)}, {sr(s0)}, {sr(s_w)}
    s_lshl_b32 {sr(s0)}, {sr(s0)}, 7
    s_add_u32 {sr(s0)}, {sr(s0)}, {WS_PROF}
    v_lshlrev_b32 {vr(vt0)}, 2, v0
    s_mov_b32 exec_hi, 0
    buffer_store_dword {vr(vPROF)}, {vr(vt0)}, {sr(sWK,4)}, {sr(s0)} offen
    ''')
    print('stamps', nstamp[0]-1, file=sys.stderr)
P('L_end:')

lines = fix_hazards(resolve(P))
ref = open(f'cdna_kernels/{NAME}.s.ref').read()
head = [l for l in ref.split('\n') if l.startswith(';') and '@launch' not in l]
out = '\n'.join(head) + f'\n; @launch grid=(224,1,1) block=(256,1,1) lds={LDS}\n'
out += f'''.amdgcn_target "amdgcn-amd-amdhsa--gfx950"
.text
.globl {NAME}_kernel
.p2align 8
.type {NAME}_kernel,@function
{NAME}_kernel:
'''
out += '\n'.join(('' if l.endswith(':') else '    ') + l for l in lines)
out += f'''
    s_endpgm
.fill 512, 4, 0xbf800000
    s_endpgm
.section .rodata,"a"
.p2align 6
.amdhsa_kernel {NAME}_kernel
  .amdhsa_next_free_vgpr 512
  .amdhsa_next_free_sgpr 102
  .amdhsa_accum_offset 256
  .amdhsa_group_segment_fixed_size 0
  .amdhsa_kernarg_size 120
  .amdhsa_user_sgpr_count 2
  .amdhsa_user_sgpr_kernarg_segment_ptr 1
  .amdhsa_system_sgpr_workgroup_id_x 1
  .amdhsa_float_denorm_mode_32 3
.end_amdhsa_kernel
'''
open(OUTP, 'w').write(out)
print('instructions', len(lines), 'vgpr peak', V.peak, 'sgpr peak', S.peak, file=sys.stderr)
```

```python
import sys, struct
sys.path.insert(0, 'gen')
from asmlib import *

NAME = 'gated_mix__ssm_conv_h3__mixer_gmlp__prompt'
PROFILE = '--prof' in sys.argv
OUTP = [a for a in sys.argv[1:] if not a.startswith('--')]
OUTP = OUTP[0] if OUTP else f'cdna_kernels/{NAME}.s'

def f32(x): return '0x%08x' % struct.unpack('<I', struct.pack('<f', x))[0]

WS_F1, WS_FH, WS_FY, WS_FA, WS_FB = 0x10000, 0x18000, 0x20000, 0x28000, 0x48000
WS_ST, WS_KVT, WS_Y, WS_Z2, WS_H, WS_PART, WS_PROF = 0x80000, 0x100000, 0x300000, 0x500000, 0x900000, 0xD00000, 0x1400000
WS_SIZE = 0x1500000
L_W = 0; L_XS = 57344; XS_W = 20480; L_KS = 139264; L_VS = L_KS + 9*1040; L_GATE = 157696; L_STAT = 158720
L_RED = 114688; L_HC = 139264; HSTR = 4160; L_U = L_RED; USTR = 4608; L_CB = 0
LDS = 163840
NSLOT = 5

V = Alloc(1, 256)
S = Alloc(4, 100)
P = Stream()

sX, sK, sV, sHK, sWI, sWS, sWO, sO, sWK, sG = [S.get(4, n) for n in 'X K V HK WI WSP WO O WK G'.split()]
sSH, sD, sB = [S.get(2, n) for n in 'SH D B'.split()]
s_w, s_j, s_kh, s_tb, s_jf, s_t64, s_lid, s_tag = [S.get(1, n) for n in 'w j kh tb jf t64 lid tag'.split()]
s0, s1, s2_, s3_ = [S.get(1, f'tmp{i}') for i in range(4)]
sEX = S.get(2, 'execsave'); sKHM = S.get(2, 'khmask'); sC = S.get(2, 'const')
s_cnt = S.get(1, 'pollcnt')
s_kc = S.get(7, 'kchunk', align=1)
s_xs = S.get(1, 'xsbase')
s_row = S.get(1, 'rowoff')
nstamp = [0]
s_st = S.get(2, 'stamps') if PROFILE else None
vPROF = V.get(1, 'prof') if PROFILE else None
def stamp(p=None):
    if PROFILE:
        p = p or P
        i = nstamp[0]; nstamp[0] += 1
        assert i < 32
        if i > 0:
            p.waitall(vm=False)
            p(f'v_writelane_b32 {vr(vPROF)}, {sr(s_st)}, {i-1}')
        p(f's_memrealtime {sr(s_st, 2)}')

lab = [0]
def label(n):
    lab[0] += 1
    return f'L_{n}_{lab[0]}'

def dma(p, vaddr, srd, soff, lds_s, lds_imm, flags='', tag=None):
    if lds_s is None: p(f's_mov_b32 m0, {lds_imm}')
    else: p(f's_add_u32 m0, {sr(lds_s)}, {lds_imm}')
    return p(f'buffer_load_dwordx4 {vr(vaddr)}, {sr(srd,4)}, {soff} offen {flags} lds', tag or T('dma'))

def poll(p, vaddr, soff, vtmp):
    l0, l1 = label('poll'), label('pollok')
    p(f's_mov_b32 {sr(s_cnt)}, 0')
    p(f'{l0}:')
    p(f'buffer_load_dword {vr(vtmp)}, {vr(vaddr)}, {sr(sWK,4)}, {soff} offen sc1')
    p.waitall(vm=True, lgkm=False)
    p(f'v_cmp_ne_u32 vcc, {sr(s_tag)}, {vr(vtmp)}')
    p(f's_cbranch_vccz {l1}')
    p(f's_add_u32 {sr(s_cnt)}, {sr(s_cnt)}, 1')
    p(f's_cmp_lt_u32 {sr(s_cnt)}, 20000')
    p(f's_cbranch_scc1 {l0}')
    p(f'{l1}:')

stamp()
P('s_cmp_ge_u32 s2, 224')
P('s_cbranch_scc1 L_end')
for reg, slot in ((sX,0),(sWI,7),(sK,1),(sV,2),(sSH,3),(sHK,4),(sD,5),(sWS,8),(sB,9),(sWO,10),(sG,11),(sO,12),(sWK,14)):
    P(f's_load_dwordx2 {sr(reg,2)}, s[0:1], {slot*8}')
for reg, size in ((sX,1835008),(sK,1835008),(sV,1835008),(sHK,1835008),(sWI,1605632),(sWS,8388608),(sWO,802816),(sO,1835008),(sWK,WS_SIZE),(sG,896)):
    P(f's_mov_b32 {sr(reg+2)}, {size}')
    P(f's_mov_b32 {sr(reg+3)}, 0x20000')
vL = 0
vt0, vt1, vt2 = [V.get(1, f't{i}') for i in range(3)]
vTAG = V.get(4, 'tag4'); vQ = V.get(8, 'q'); vGT = V.get(4, 'gate'); vZ = V.get(32, 'zz')
vWR = V.get(4, 'wr', align=1); vBS = V.get(2, 'bsp', align=1)
vL16, vCOL, vFL, vFLW, vDD = [V.get(1, n) for n in 'lane16 colflags flagoff flagoffw ssmD'.split()]
P(f'v_lshrrev_b32 {vr(vt0)}, 6, v0')
P(f'v_and_b32 v0, 63, v0')
P(f'v_readfirstlane_b32 {sr(s_w)}, {vr(vt0)}')
if '--nopf' not in sys.argv:
    P(f'''
    s_getpc_b64 {sr(sEX,2)}
    s_lshr_b32 {sr(s0)}, s2, 3
    s_lshl_b32 {sr(s0)}, {sr(s0)}, 2
    s_add_u32 {sr(s0)}, {sr(s0)}, {sr(s_w)}
    s_and_b32 {sr(s0)}, {sr(s0)}, 31
    s_lshl_b32 {sr(s0)}, {sr(s0)}, 10
    v_lshl_add_u32 {vr(vt1)}, v0, 4, {sr(s0)}
    global_load_dwordx4 {vr(vTAG,4)}, {vr(vt1)}, {sr(sEX,2)}
    ''')
P(f'''
s_and_b32 {sr(s_kh)}, s2, 1
s_lshr_b32 {sr(s0)}, s2, 3
s_mul_i32 {sr(s1)}, {sr(s0)}, 37
s_lshr_b32 {sr(s1)}, {sr(s1)}, 8
s_mul_i32 {sr(s2_)}, {sr(s1)}, 7
s_sub_u32 {sr(s_j)}, {sr(s0)}, {sr(s2_)}
s_and_b32 {sr(s0)}, s2, 6
s_lshl_b32 {sr(s0)}, {sr(s0)}, 1
s_add_u32 {sr(s_tb)}, {sr(s0)}, {sr(s1)}
s_lshl_b32 {sr(s0)}, {sr(s_j)}, 1
s_add_u32 {sr(s_jf)}, {sr(s0)}, {sr(s_kh)}
s_lshl_b32 {sr(s0)}, {sr(s_tb)}, 1
s_add_u32 {sr(s_t64)}, {sr(s0)}, {sr(s_kh)}
s_lshl_b32 {sr(s0)}, {sr(s_j)}, 5
s_add_u32 {sr(s_lid)}, {sr(s0)}, {sr(s_t64)}
s_cmp_eq_u32 {sr(s_kh)}, 1
s_cselect_b64 {sr(sKHM,2)}, -1, 0
s_mul_i32 {sr(s_xs)}, {sr(s_w)}, {XS_W}
s_add_u32 {sr(s_xs)}, {sr(s_xs)}, {L_XS}
''')
for cs in range(7):
    P(f's_add_u32 {sr(s0)}, {sr(s_j)}, {cs}')
    P(f's_sub_u32 {sr(s1)}, {sr(s0)}, 7')
    P(f's_cmp_ge_u32 {sr(s0)}, 7')
    P(f's_cselect_b32 {sr(s0)}, {sr(s1)}, {sr(s0)}')
    P(f's_lshl_b32 {sr(s_kc+cs)}, {sr(s0)}, 7')
vWI, vXE, vXO = V.get(1,'wi_src'), V.get(1,'x_even'), V.get(1,'x_odd')
vR8, vUW, vUE, vUO = V.get(1,'row8'), V.get(1,'unit_w'), V.get(1,'unit_e'), V.get(1,'unit_o')
P(f'''
v_lshrrev_b32 {vr(vR8)}, 3, v0
v_and_b32 {vr(vt0)}, 7, v0
v_lshrrev_b32 {vr(vt1)}, 4, v0
v_lshlrev_b32 {vr(vt2)}, 1, {vr(vt1)}
v_xor_b32 {vr(vUW)}, {vr(vt0)}, {vr(vt2)}
v_lshlrev_b32 {vr(vUW)}, 4, {vr(vUW)}
v_xor_b32 {vr(vUE)}, {vr(vt0)}, {vr(vt1)}
v_lshlrev_b32 {vr(vUE)}, 4, {vr(vUE)}
v_xor_b32 {vr(vUO)}, 64, {vr(vUE)}
v_mul_u32_u24 {vr(vWI)}, 3584, {vr(vR8)}
v_add_u32 {vr(vWI)}, {vr(vWI)}, {vr(vUW)}
v_mul_u32_u24 {vr(vt0)}, 896, {vr(vR8)}
v_add_u32 {vr(vXE)}, {vr(vt0)}, {vr(vUE)}
v_add_u32 {vr(vXO)}, {vr(vt0)}, {vr(vUO)}
v_add_u32 {vr(vXO)}, {8*896}, {vr(vXO)}
''')
P.waitall(vm=False)
P(f's_load_dword {sr(s_tag)}, {sr(sWK,2)}, 0', 'epoch')

def issue_w(p, colbyte_s_expr):
    tags = []
    p(f's_lshl_b32 {sr(s2_)}, {sr(s_w)}, 11')
    p(f's_mul_i32 {sr(s1)}, {sr(s_w)}, {16*3584}')
    p(f's_add_u32 {sr(s1)}, {sr(s1)}, {sr(s3_)}')
    for cs in range(7):
        p(f's_mul_i32 {sr(s0)}, {sr(s_kc+cs)}, {64*3584//128}')
        p(f's_add_u32 {sr(s0)}, {sr(s0)}, {sr(s1)}')
        tags.append(dma(p, vWI, sWI, sr(s0), s2_, L_W + cs*8192))
        p(f's_add_u32 {sr(s0)}, {sr(s0)}, {8*3584}')
        tags.append(dma(p, vWI, sWI, sr(s0), s2_, L_W + cs*8192 + 1024))
    return tags
P(f's_lshl_b32 {sr(s3_)}, {sr(s_jf)}, 7')
P(f's_add_u32 {sr(s3_)}, {sr(s3_)}, 1792')
w2tags = issue_w(P, None)
P(f's_lshl_b32 {sr(s0)}, {sr(s_tb)}, 2')
P(f's_add_u32 {sr(s0)}, {sr(s0)}, {sr(s_w)}')
P(f's_mul_i32 {sr(s_row)}, {sr(s0)}, {32*896}')
def issue_x(p, cs):
    slot = cs % NSLOT
    p(f's_add_u32 {sr(s0)}, {sr(s_row)}, {sr(s_kc+cs)}')
    dma(p, vXE, sX, sr(s0), s_xs, slot*4096)
    dma(p, vXO, sX, sr(s0), s_xs, slot*4096 + 1024)
    p(f's_add_u32 {sr(s0)}, {sr(s0)}, {16*896}')
    dma(p, vXE, sX, sr(s0), s_xs, slot*4096 + 2048)
    return dma(p, vXO, sX, sr(s0), s_xs, slot*4096 + 3072)
xtag = {}
for cs in range(NSLOT): xtag[cs] = issue_x(P, cs)

vXR = V.get(4, 'xr', align=1)
P(f'''
v_and_b32 {vr(vt0)}, 15, v0
v_lshrrev_b32 {vr(vt1)}, 5, v0
v_lshrrev_b32 {vr(vt2)}, 1, {vr(vt0)}
v_xor_b32 {vr(vt1)}, {vr(vt1)}, {vr(vt2)}
v_lshlrev_b32 {vr(vt1)}, 4, {vr(vt1)}
v_lshl_add_u32 {vr(vt1)}, {vr(vt0)}, 7, {vr(vt1)}
v_bfe_u32 {vr(vt2)}, v0, 4, 1
v_lshl_add_u32 {vr(vt1)}, {vr(vt2)}, 3, {vr(vt1)}
''')
for c in range(4):
    P(f'v_xor_b32 {vr(vXR+c)}, {32*c}, {vr(vt1)}')
    P(f'v_add_u32 {vr(vXR+c)}, {sr(s_xs)}, {vr(vXR+c)}')
P(f'''
v_lshrrev_b32 {vr(vt0)}, 2, v0
v_bfe_u32 {vr(vt1)}, v0, 3, 2
v_lshlrev_b32 {vr(vt1)}, 5, {vr(vt1)}
v_lshl_add_u32 {vr(vt1)}, {vr(vt0)}, 7, {vr(vt1)}
v_and_b32 {vr(vt2)}, 3, v0
v_lshl_add_u32 {vr(vt1)}, {vr(vt2)}, 3, {vr(vt1)}
''')
for nt in range(4):
    P(f'v_xor_b32 {vr(vWR+nt)}, {32*nt}, {vr(vt1)}')
P(f'v_lshlrev_b32 {vr(vL16)}, 4, v0')
P.wait('epoch')
P(f's_add_u32 {sr(s_tag)}, {sr(s_tag)}, 0x9E3779B9')

vX = V.get(112, 'xfrags')
xf = lambda ks, a: vX + (ks*2 + a)*4
vWF = V.get(32, 'wfrags')
def read_x(p, cs):
    slot = cs % NSLOT
    tg = None
    for k2 in range(2):
        for a in range(2):
            for h in range(2):
                tg = p(f'ds_read_b64 {vr(xf(2*cs+k2, a)+2*h, 2)}, {vr(vXR+2*k2+h)} offset:{slot*4096 + a*2048}', T('xr'))
    return tg
def read_w(p, ks, dst, addr=vWR, agpr=False):
    tg = []
    for nt in range(4):
        for h in range(2):
            d = ar(dst+nt*4+2*h, 2) if agpr else vr(dst+nt*4+2*h, 2)
            t = p(f'ds_read_b64_tr_b16 {d}, {vr(addr+nt)} offset:{ks*4096 + h*2048}', T('wr'))
        tg.append(t)
    return tg

P.wait(w2tags[-1])
P('s_barrier')
stamp()
kvtags = []
def issue_kv(p):
    vKV = V.get(1, 'kv_src'); vKH = V.get(1, 'kh_src')
    p(f'v_and_b32 {vr(vt0)}, 7, v0')
    p(f'v_lshlrev_b32 {vr(vt0)}, 4, {vr(vt0)}')
    p(f'v_mul_u32_u24 {vr(vKV)}, 896, {vr(vR8)}')
    p(f'v_add_u32 {vr(vKV)}, {vr(vKV)}, {vr(vt0)}')
    p(f's_mul_i32 {sr(s1)}, {sr(s_t64)}, {64*896}')
    p(f's_lshl_b32 {sr(s0)}, {sr(s_j)}, 7')
    p(f's_add_u32 {sr(s1)}, {sr(s1)}, {sr(s0)}')
    p(f's_sub_u32 {sr(s0)}, {sr(s1)}, {8*896}')
    p(f'v_add_u32 {vr(vKH)}, {sr(s0)}, {vr(vKV)}')
    p(f's_mul_i32 {sr(s0)}, {sr(s_w)}, {16*896}')
    p(f's_add_u32 {sr(s1)}, {sr(s1)}, {sr(s0)}')
    p(f's_mul_i32 {sr(s2_)}, {sr(s_w)}, 2080')
    dma(p, vKV, sK, sr(s1), s2_, L_KS + 1040)
    dma(p, vKV, sV, sr(s1), s2_, L_VS)
    p(f's_add_u32 {sr(s1)}, {sr(s1)}, {8*896}')
    dma(p, vKV, sK, sr(s1), s2_, L_KS + 2080)
    dma(p, vKV, sV, sr(s1), s2_, L_VS + 1040)
    p(f's_lshl_b32 {sr(s0)}, {sr(s_w)}, 4')
    p(f's_lshl_b64 exec, 0xffff, {sr(s0)}')
    dma(p, vKH, sK, '0', None, L_KS)
    p(f's_mov_b64 exec, -1')
    p(f'v_add_u32 {vr(vt1)}, {sr(s_j)}, {vr(vR8)}')
    p(f'v_subrev_u32 {vr(vt2)}, 7, {vr(vt1)}')
    p(f'v_min_u32 {vr(vt1)}, {vr(vt1)}, {vr(vt2)}')
    p(f'v_lshl_add_u32 {vr(vt1)}, {vr(vt1)}, 7, {vr(vt0)}')
    p(f's_lshl_b64 exec, 0xffff, {sr(s0)}')
    t = dma(p, vt1, sG, '0', None, L_GATE)
    p(f's_mov_b64 exec, -1')
    V.free(vKV, 1); V.free(vKH, 1)
    return t

def gemm7(p, acc, xa, first_reads_x):
    wt = read_w(p, 0, vWF)
    for ks in range(14):
        cs = ks // 2
        if first_reads_x and ks % 2 == 0:
            p.wait(xtag[cs])
            xr = read_x(p, cs)
        cur = vWF + 16*(ks % 2)
        nxt = read_w(p, ks+1, vWF + 16*((ks+1) % 2)) if ks < 13 else None
        if first_reads_x and ks % 2 == 0:
            p.wait(xr)
            if cs + NSLOT < 7: xtag[cs+NSLOT] = issue_x(p, cs + NSLOT)
            if cs == 1: kvtags.append(issue_kv(p))
        for nt in range(4):
            p.wait(wt[nt])
            for a in range(2):
                d = vr(acc + (a*4+nt)*4, 4)
                A, B = vr(xf(ks, a), 4), vr(cur + nt*4, 4)
                if not xa: A, B = B, A
                p(f'v_mfma_f32_16x16x32_bf16 {d}, {A}, {B}, {"0" if ks == 0 else d}')
        wt = nxt
gemm7(P, vZ, True, True)
V.free(vWF, 32)
P('s_barrier')
stamp()
P(f's_lshl_b32 {sr(s3_)}, {sr(s_jf)}, 7')
w1tags = issue_w(P, None)

vSH = V.get(4, 'shift')
P(f'''
s_lshl_b32 {sr(s0)}, {sr(s_j)}, 9
s_lshl_b32 {sr(s1)}, {sr(s_w)}, 7
s_add_u32 {sr(s0)}, {sr(s0)}, {sr(s1)}
v_lshl_add_u32 {vr(vt0)}, {vr(vR8)}, 4, {sr(s0)}
''')
P(f'global_load_dwordx4 {vr(vSH,4)}, {vr(vt0)}, {sr(sSH,2)}', 'shift')
P(f'''
s_lshl_b32 {sr(s0)}, {sr(s_tb)}, 8
s_lshl_b32 {sr(s1)}, {sr(s_w)}, 6
s_add_u32 {sr(s0)}, {sr(s0)}, {sr(s1)}
v_and_b32 {vr(vt0)}, 15, v0
v_lshl_add_u32 {vr(vt0)}, {vr(vt0)}, 1, {sr(s0)}
''')
P(f'global_load_ushort {vr(vBS)}, {vr(vt0)}, {sr(sB,2)}')
P(f'global_load_ushort {vr(vBS+1)}, {vr(vt0)}, {sr(sB,2)} offset:32', 'bsp')

K1, K2 = -2.302208198, -2.302208198*0.044715
vK1 = V.get(2, 'k1')
P(f'v_mov_b32 {vr(vK1)}, {f32(K1)}')
P(f'v_mov_b32 {vr(vK1+1)}, {f32(K1)}')
P(f's_mov_b32 {sr(sC)}, {f32(K2)}')
P(f's_mov_b32 {sr(sC+1)}, {f32(K2)}')
def gelu(p, base, n):
    tmp = V.get(8, 'gelu_tmp')
    for g in range(0, n, 8):
        x = lambda i: vr(base+g+2*i, 2)
        t = lambda i: vr(tmp+2*i, 2)
        for i in range(4): p(f'v_pk_mul_f32 {t(i)}, {x(i)}, {x(i)}')
        for i in range(4): p(f'v_pk_fma_f32 {t(i)}, {t(i)}, {sr(sC,2)}, {vr(vK1,2)}')
        for i in range(4): p(f'v_pk_mul_f32 {t(i)}, {t(i)}, {x(i)}')
        for i in range(8): p(f'v_exp_f32 {vr(tmp+i)}, {vr(tmp+i)}')
        for i in range(4): p(f'v_pk_add_f32 {t(i)}, {t(i)}, 1.0 op_sel_hi:[1,0]')
        for i in range(8): p(f'v_rcp_f32 {vr(tmp+i)}, {vr(tmp+i)}')
        for i in range(4): p(f'v_pk_mul_f32 {x(i)}, {t(i)}, {x(i)}')
    V.free(tmp, 8)
gelu(P, vZ, 32)

vS = V.get(16, 'stat')
z = lambda a, nt, r: vZ + (a*4+nt)*4 + r
for a in range(2):
    for h in range(2):
        P(f'v_pk_add_f32 {vr(vS+a*4+2*h,2)}, {vr(z(a,0,2*h),2)}, {vr(z(a,1,2*h),2)}')
        P(f'v_pk_mul_f32 {vr(vS+8+a*4+2*h,2)}, {vr(z(a,0,2*h),2)}, {vr(z(a,0,2*h),2)}')
for nt in range(1, 4):
    for a in range(2):
        for h in range(2):
            if nt > 1: P(f'v_pk_add_f32 {vr(vS+a*4+2*h,2)}, {vr(vS+a*4+2*h,2)}, {vr(z(a,nt,2*h),2)}')
            P(f'v_pk_fma_f32 {vr(vS+8+a*4+2*h,2)}, {vr(z(a,nt,2*h),2)}, {vr(z(a,nt,2*h),2)}, {vr(vS+8+a*4+2*h,2)}')
vS2 = V.get(12, 'stat2')
for k in range(2):
    for r in range(4):
        P(f'v_add_f32_dpp {vr(vS2+k*4+r)}, {vr(vS+8*k+r)}, {vr(vS+8*k+r)} row_mirror row_mask:0xf bank_mask:0x3')
for k in range(2):
    for r in range(4):
        P(f'v_add_f32_dpp {vr(vS2+k*4+r)}, {vr(vS+8*k+4+r)}, {vr(vS+8*k+4+r)} row_mirror row_mask:0xf bank_mask:0xc')
for k in range(2):
    for r in range(2):
        P(f'v_add_f32_dpp {vr(vS2+8+k*2+r)}, {vr(vS2+4*k+r)}, {vr(vS2+4*k+r)} row_half_mirror row_mask:0xf bank_mask:0x5')
for k in range(2):
    for r in range(2):
        P(f'v_add_f32_dpp {vr(vS2+8+k*2+r)}, {vr(vS2+4*k+2+r)}, {vr(vS2+4*k+2+r)} row_half_mirror row_mask:0xf bank_mask:0xa')
for perm in ('[1,0,3,2]', '[2,3,0,1]'):
    for i in range(4):
        P(f'v_add_f32_dpp {vr(vS2+8+i)}, {vr(vS2+8+i)}, {vr(vS2+8+i)} quad_perm:{perm} row_mask:0xf bank_mask:0xf')
P(f'''
v_and_b32 {vr(vt0)}, 1, v0
v_cmp_eq_u32 vcc, 1, {vr(vt0)}
v_bfe_u32 {vr(vt1)}, v0, 2, 1
v_lshl_add_u32 {vr(vt0)}, {vr(vt1)}, 1, {vr(vt0)}
v_lshrrev_b32 {vr(vt1)}, 4, v0
v_lshl_add_u32 {vr(vt0)}, {vr(vt1)}, 2, {vr(vt0)}
v_bfe_u32 {vr(vt1)}, v0, 3, 1
v_lshl_add_u32 {vr(vt0)}, {vr(vt1)}, 4, {vr(vt0)}
v_lshlrev_b32 {vr(vt0)}, 4, {vr(vt0)}
v_cndmask_b32 {vr(vS)}, {vr(vS2+8)}, {vr(vS2+9)}, vcc
v_cndmask_b32 {vr(vS+2)}, {vr(vS2+10)}, {vr(vS2+11)}, vcc
v_mov_b32 {vr(vS+1)}, {sr(s_tag)}
v_mov_b32 {vr(vS+3)}, {sr(s_tag)}
s_mul_i32 {sr(s0)}, {sr(s_tb)}, {14*2048}
s_lshl_b32 {sr(s1)}, {sr(s_w)}, 9
s_add_u32 {sr(s0)}, {sr(s0)}, {sr(s1)}
s_add_u32 {sr(s3_)}, {sr(s0)}, {WS_ST}
s_lshl_b32 {sr(s1)}, {sr(s_jf)}, 11
s_add_u32 {sr(s0)}, {sr(s3_)}, {sr(s1)}
s_mov_b32 exec_lo, 0x33333333
s_mov_b32 exec_hi, 0x33333333
buffer_store_dwordx4 {vr(vS,4)}, {vr(vt0)}, {sr(sWK,4)}, {sr(s0)} offen sc1
s_mov_b64 exec, -1
''')
s_stb = S.get(1, 'statbase')
P(f's_mov_b32 {sr(s_stb)}, {sr(s3_)}')
V.free(vS2, 12); V.free(vS, 16)
stamp()

P.wait(kvtags[0], w1tags[-1], 'shift', 'bsp')
P('s_barrier')
def p0(p):
    vKk = V.get(11, 'k', align=1); vVv = V.get(8, 'v', align=1); vA = V.get(1, 'kaddr')
    p(f'''
    v_and_b32 {vr(vt0)}, 7, v0
    v_sub_u32 {vr(vt1)}, 7, {vr(vt0)}
    v_mul_u32_u24 {vr(vt1)}, 1040, {vr(vt1)}
    s_lshl_b32 {sr(s0)}, {sr(s_w)}, 5
    s_add_u32 {sr(s0)}, {sr(s0)}, {L_KS}
    v_lshl_add_u32 {vr(vA)}, {vr(vR8)}, 2, {sr(s0)}
    v_add_u32 {vr(vA)}, {vr(vA)}, {vr(vt1)}
    ''')
    for i in range(-3, 8):
        p(f'ds_read_b32 {vr(vKk+i+3)}, {vr(vA)} offset:{1040+128*i if i >= 0 else (8+i)*128}', T('k'))
    for i in range(8):
        tv = p(f'ds_read_b32 {vr(vVv+i)}, {vr(vA)} offset:{L_VS-L_KS+128*i}', T('v'))
    tap = V.get(4, 'tap'); kk = V.get(11, 'kf', align=1); ac = V.get(8, 'ac'); o = V.get(8, 'kvout')
    p(f'''
    s_lshl_b32 {sr(s0)}, {sr(s_j)}, 18
    s_lshl_b32 {sr(s1)}, {sr(s_w)}, 16
    s_add_u32 {sr(s0)}, {sr(s0)}, {sr(s1)}
    s_lshl_b32 {sr(s1)}, {sr(s_t64)}, 7
    s_sub_u32 {sr(s0)}, {sr(s0)}, {sr(s1)}
    s_add_u32 {sr(s0)}, {sr(s0)}, {WS_KVT + 2*1984}
    v_lshlrev_b32 {vr(vt0)}, 4, {vr(vt0)}
    v_lshl_add_u32 {vr(vt0)}, {vr(vR8)}, 13, {vr(vt0)}
    ''')
    p.wait(tv)
    for ch in range(2):
        un = (lambda d, s_: f'v_lshlrev_b32 {vr(d)}, 16, {vr(s_)}') if ch == 0 else (lambda d, s_: f'v_and_b32 {vr(d)}, 0xffff0000, {vr(s_)}')
        for t in range(4):
            src = vSH + 2*ch + t//2
            p(f'v_lshlrev_b32 {vr(tap+t)}, 16, {vr(src)}' if t % 2 == 0 else f'v_and_b32 {vr(tap+t)}, 0xffff0000, {vr(src)}')
        for i in range(11): p(un(kk+i, vKk+i))
        for i in range(8): p(f'v_mul_f32 {vr(ac+i)}, {vr(tap+3)}, {vr(kk+i)}')
        for t in (2, 1, 0):
            for i in range(8): p(f'v_fmac_f32 {vr(ac+i)}, {vr(tap+t)}, {vr(kk+i+3-t)}')
        for i in range(8): p(un(kk+i, vVv+i))
        for i in range(8): p(f'v_mul_f32 {vr(ac+i)}, {vr(ac+i)}, {vr(kk+i)}')
        for e in range(4): p(f'v_cvt_pk_bf16_f32 {vr(o+4*ch+e)}, {vr(ac+7-2*e)}, {vr(ac+6-2*e)}')
        if ch == 1: p(f's_add_u32 {sr(s0)}, {sr(s0)}, 4096')
        p(f'buffer_store_dwordx4 {vr(o+4*ch,4)}, {vr(vt0)}, {sr(sWK,4)}, {sr(s0)} offen sc1')
    for r, n in ((vKk,11),(vVv,8),(vA,1),(tap,4),(kk,11),(ac,8),(o,8)): V.free(r, n)
p0(P)
V.free(vSH, 4)

def gather(p):
    g = V.get(28, 'gath'); va = V.get(1, 'gaddr'); an = V.get(1, 'and'); orr = V.get(1, 'or')
    p(f'''
    v_and_b32 {vr(vt0)}, 31, v0
    v_lshlrev_b32 {vr(vt0)}, 4, {vr(vt0)}
    v_lshrrev_b32 {vr(vt1)}, 5, v0
    v_mul_u32_u24 {vr(vt1)}, {7*2048}, {vr(vt1)}
    v_add_u32 {vr(va)}, {vr(vt0)}, {vr(vt1)}
    s_mov_b32 {sr(s_cnt)}, 0
    ''')
    l0, l1 = label('gath'), label('gathok')
    p(f'{l0}:')
    for i in range(7):
        p(f's_add_u32 {sr(s0)}, {sr(s_stb)}, {i*2048}')
        p(f'buffer_load_dwordx4 {vr(g+4*i,4)}, {vr(va)}, {sr(sWK,4)}, {sr(s0)} offen sc1')
    p.waitall(vm=True, lgkm=False)
    p(f'v_and_b32 {vr(an)}, {vr(g+1)}, {vr(g+3)}')
    p(f'v_or_b32 {vr(orr)}, {vr(g+1)}, {vr(g+3)}')
    for i in range(1, 7):
        p(f'v_bitop3_b32 {vr(an)}, {vr(an)}, {vr(g+4*i+1)}, {vr(g+4*i+3)} bitop3:0x80')
        p(f'v_or3_b32 {vr(orr)}, {vr(orr)}, {vr(g+4*i+1)}, {vr(g+4*i+3)}')
    p(f'v_xor_b32 {vr(an)}, {sr(s_tag)}, {vr(an)}')
    p(f'v_xor_b32 {vr(orr)}, {sr(s_tag)}, {vr(orr)}')
    p(f'v_or_b32 {vr(an)}, {vr(an)}, {vr(orr)}')
    p(f'v_cmp_ne_u32 vcc, 0, {vr(an)}')
    p(f's_cbranch_vccz {l1}')
    p(f's_add_u32 {sr(s_cnt)}, {sr(s_cnt)}, 1')
    p(f's_cmp_lt_u32 {sr(s_cnt)}, 20000')
    p(f's_cbranch_scc1 {l0}')
    p(f'{l1}:')
    for (a, b) in ((0,1),(2,3),(4,5),(0,6),(2,4),(0,2)):
        p(f'v_add_f32 {vr(g+4*a)}, {vr(g+4*a)}, {vr(g+4*b)}')
        p(f'v_add_f32 {vr(g+4*a+2)}, {vr(g+4*a+2)}, {vr(g+4*b+2)}')
    p(f'v_mov_b32 {vr(g+1)}, {vr(g)}')
    p(f'v_mov_b32 {vr(g+3)}, {vr(g+2)}')
    p(f'v_permlane32_swap_b32 {vr(g)}, {vr(g+1)}')
    p(f'v_permlane32_swap_b32 {vr(g+2)}, {vr(g+3)}')
    p(f'''
    v_add_f32 {vr(g)}, {vr(g)}, {vr(g+1)}
    v_add_f32 {vr(g+2)}, {vr(g+2)}, {vr(g+3)}
    v_mul_f32 {vr(g)}, {f32(1/896)}, {vr(g)}
    v_mul_f32 {vr(g+2)}, {f32(1/896)}, {vr(g+2)}
    v_fma_f32 {vr(g+2)}, -{vr(g)}, {vr(g)}, {vr(g+2)}
    v_max_f32 {vr(g+2)}, 0, {vr(g+2)}
    v_add_f32 {vr(g+2)}, {f32(1e-5)}, {vr(g+2)}
    v_rsq_f32 {vr(g+2)}, {vr(g+2)}
    s_lshl_b32 {sr(s0)}, {sr(s_w)}, 8
    s_add_u32 {sr(s0)}, {sr(s0)}, {L_STAT}
    v_mul_f32 {vr(g)}, {vr(g)}, {vr(g+2)}
    v_cmp_gt_u32 vcc, 32, v0
    v_lshl_add_u32 {vr(vt0)}, v0, 2, {sr(s0)}
    v_cndmask_b32 {vr(g)}, {vr(g)}, {vr(g+2)}, vcc
    ''')
    tw = p(f'ds_write_b32 {vr(vt0)}, {vr(g)}', T('sw'))
    p(f'v_lshrrev_b32 {vr(vt1)}, 4, v0')
    p(f'v_lshl_add_u32 {vr(vt1)}, {vr(vt1)}, 4, {sr(s0)}')
    p.wait(tw)
    for a in range(2):
        p(f'ds_read_b128 {vr(g+4+8*a,4)}, {vr(vt1)} offset:{64*a}')
        tr = p(f'ds_read_b128 {vr(g+8+8*a,4)}, {vr(vt1)} offset:{128+64*a}', T('sr'))
    p(f'''
    s_lshl_b32 {sr(s0)}, {sr(s_jf)}, 18
    s_lshl_b32 {sr(s1)}, {sr(s_tb)}, 12
    s_add_u32 {sr(s0)}, {sr(s0)}, {sr(s1)}
    s_lshl_b32 {sr(s1)}, {sr(s_w)}, 10
    s_add_u32 {sr(s0)}, {sr(s0)}, {sr(s1)}
    s_add_u32 {sr(s0)}, {sr(s0)}, {WS_Z2}
    ''')
    p.wait(tr)
    o = V.get(16, 'z2out')
    for nt in range(4):
        for a in range(2):
            for h in range(2):
                p(f'v_pk_fma_f32 {vr(z(a,nt,2*h),2)}, {vr(z(a,nt,2*h),2)}, {vr(g+4+8*a+2*h,2)}, {vr(g+8+8*a+2*h,2)} neg_lo:[0,0,1] neg_hi:[0,0,1]')
        for a in range(2):
            for h in range(2):
                p(f'v_cvt_pk_bf16_f32 {vr(o+4*nt+2*a+h)}, {vr(z(a,nt,2*h))}, {vr(z(a,nt,2*h+1))}')
        t = p(f'buffer_store_dwordx4 {vr(o+4*nt,4)}, {vr(vL16)}, {sr(sWK,4)}, {sr(s0)} offen sc1', T('z2st'))
        if nt < 3: p(f's_add_u32 {sr(s0)}, {sr(s0)}, 65536')
    V.free(g, 28); V.free(va, 1); V.free(an, 1); V.free(orr, 1); V.free(o, 16)
    return t
z2st = gather(P)
stamp()

P(f'''
s_cmp_eq_u32 {sr(s_w)}, 0
s_cselect_b32 {sr(s0)}, 0, 0x40000000
v_cmp_gt_u32 vcc, 8, v0
v_mov_b32 {vr(vt0)}, 0x40000000
v_cndmask_b32 {vr(vt0)}, {vr(vt0)}, {vr(vL16)}, vcc
v_add_u32 {vr(vFL)}, {sr(s0)}, {vr(vt0)}
''')
P(f'v_mov_b32 {vr(vFLW)}, {vr(vt0)}')
for i in range(4): P(f'v_mov_b32 {vr(vTAG+i)}, {sr(s_tag)}')
def flag_wg(p, base):
    p(f's_lshl_b32 {sr(s0)}, {sr(s_lid)}, 7')
    p(f's_add_u32 {sr(s0)}, {sr(s0)}, {base}')
    p(f'buffer_store_dwordx4 {vr(vTAG,4)}, {vr(vFL)}, {sr(sWK,4)}, {sr(s0)} offen sc1')

vZ1 = vZ
vWF = V.get(32, 'wfrags')
gemm7(P, vZ1, False, False)
P.wait(z2st)
P('s_barrier')
flag_wg(P, WS_F1)
stamp()
vH0 = V.get(1, 'h0')
P(f'''
s_lshl_b32 {sr(s0)}, {sr(s_j)}, 6
s_lshl_b32 {sr(s1)}, {sr(s_t64)}, 1
s_add_u32 {sr(s0)}, {sr(s0)}, {sr(s1)}
s_lshl_b32 {sr(s1)}, {sr(s0)}, 1
v_mov_b32 {vr(vt0)}, {sr(s1)}
''')
P(f'global_load_dword {vr(vDD)}, {vr(vt0)}, {sr(sD,2)}', 'ssmD')
P(f'''
s_lshr_b32 {sr(s1)}, {sr(s_w)}, 1
s_add_u32 {sr(s0)}, {sr(s0)}, {sr(s1)}
s_lshl_b32 {sr(s0)}, {sr(s0)}, 12
v_mov_b32 {vr(vt0)}, 0
''')
P(f'buffer_load_ushort {vr(vH0)}, {vr(vt0)}, {sr(sHK,4)}, {sr(s0)} offen', 'h0')
P(f'''
s_and_b32 {sr(s1)}, {sr(s_w)}, 1
s_lshl_b32 {sr(s1)}, {sr(s1)}, 1
v_add_u32 {vr(vt1)}, {sr(s1)}, {vr(vL16)}
s_mul_i32 {sr(s2_)}, {sr(s_w)}, {HSTR}
''')
for i in range(4):
    htag = dma(P, vt1, sHK, sr(s0), s2_, L_HC + 32 + i*1024)
    if i < 3: P(f's_add_u32 {sr(s0)}, {sr(s0)}, 1024')

for k2 in range(2):
    for i in range(4):
        P(f'v_cndmask_b32 {vr(vQ+4*k2+i)}, {vr(xf(k2,0)+i)}, {vr(xf(k2,1)+i)}, {sr(sKHM,2)}')
P(f'v_lshrrev_b32 {vr(vt0)}, 4, v0')
P(f'v_lshlrev_b32 {vr(vt0)}, 3, {vr(vt0)}')
P(f'v_add_u32 {vr(vt0)}, {L_GATE}, {vr(vt0)}')
lk1, lk2 = label('gate1'), label('gatedone')
P(f's_cmp_eq_u32 {sr(s_kh)}, 1')
P(f's_cbranch_scc1 {lk1}')
for a in range(2):
    if a == 1: P(f'{lk1}:')
    for half in range(2):
        for ks in range(7):
            for h in range(2):
                P(f'ds_read_b64 {vr(vWF+4*ks+2*h,2)}, {vr(vt0)} offset:{(7*half+ks)*64+32*h}')
        P.waitall(vm=False)
        for ks in range(7):
            P(f'v_mfma_f32_16x16x32_bf16 {vr(vGT,4)}, {vr(vWF+4*ks,4)}, {vr(xf(7*half+ks,a),4)}, {"0" if half+ks == 0 else vr(vGT,4)}')
    P('s_nop 7')
    if a == 0: P(f's_branch {lk2}')
P(f'{lk2}:')
P(f'''
v_mul_f32 {vr(vGT)}, {f32(-1.4426950408889634)}, {vr(vGT)}
v_exp_f32 {vr(vGT)}, {vr(vGT)}
v_add_f32 {vr(vGT)}, 1.0, {vr(vGT)}
v_rcp_f32 {vr(vGT)}, {vr(vGT)}
v_lshlrev_b32 {vr(vBS)}, 16, {vr(vBS)}
v_lshlrev_b32 {vr(vBS+1)}, 16, {vr(vBS+1)}
v_sub_f32 {vr(vGT+1)}, 1.0, {vr(vGT)}
''')
V.free(vGT+2, 2)
V.free(vX, 112); V.free(vWF, 32)
gelu(P, vZ1, 32)
V.free(vK1, 2)

P(f'''
v_lshlrev_b32 {vr(vt0)}, 12, {vr(vR8)}
v_add_u32 {vr(vXE)}, {vr(vt0)}, {vr(vUE)}
v_add_u32 {vr(vXO)}, {vr(vt0)}, {vr(vUO)}
v_add_u32 {vr(vXO)}, {8*4096}, {vr(vXO)}
s_lshl_b32 {sr(s0)}, {sr(s_tb)}, 19
s_lshl_b32 {sr(s1)}, {sr(s_kh)}, 11
s_add_u32 {sr(s0)}, {sr(s0)}, {sr(s1)}
s_lshl_b32 {sr(s1)}, {sr(s_w)}, 9
s_add_u32 {sr(s_row)}, {sr(s0)}, {sr(s1)}
''')
s_tile = S.get(4, 'tileoff', align=1)
for t2 in range(4):
    P(f's_add_u32 {sr(s0)}, {sr(s_w)}, {t2}')
    P(f's_and_b32 {sr(s0)}, {sr(s0)}, 3')
    P(f's_lshl_b32 {sr(s0)}, {sr(s0)}, 17')
    P(f's_add_u32 {sr(s_tile+t2)}, {sr(s0)}, {sr(s_row)}')
NU = 10
units = [(kc, tau) for kc in range(4) for tau in range(8)]
utag = {}
def issue_unit(p, u):
    kc, tau = units[u]
    p(f's_add_u32 {sr(s0)}, {sr(s_tile + tau//2)}, {(tau%2)*65536 + kc*128}')
    dma(p, vXE, sWS, sr(s0), s_xs, (u % NU)*2048)
    utag[u] = dma(p, vXO, sWS, sr(s0), s_xs, (u % NU)*2048 + 1024)
for u in range(NU): issue_unit(P, u)
prev = None
for u in range(32):
    kc, tau = units[u]
    P.wait(utag[u])
    for k2 in range(2):
        for h in range(2):
            t = P(f'ds_read_b64 {ar(((2*kc+k2)*8+tau)*4+2*h,2)}, {vr(vXR+2*k2+h)} offset:{(u % NU)*2048}', T('slab'))
    if prev is not None and u - 1 + NU < 32:
        P.wait(prev); issue_unit(P, u - 1 + NU)
    prev = t
S.free(s_tile, 4)
P.wait('h0', 'ssmD', htag)
P(f'''
s_and_b32 {sr(s1)}, {sr(s_w)}, 1
s_mul_i32 {sr(s1)}, {sr(s1)}, 7
s_cmp_eq_u32 {sr(s1)}, 0
s_cselect_b32 {sr(s1)}, 64, {sr(s1)}
v_lshlrev_b32 {vr(vH0)}, 16, {vr(vH0)}
v_cmp_eq_u32 vcc, {sr(s1)}, v0
s_mul_i32 {sr(s2_)}, {sr(s_w)}, {HSTR}
s_add_u32 {sr(s2_)}, {sr(s2_)}, {L_HC}
v_cndmask_b32 {vr(vH0)}, 0, {vr(vH0)}, vcc
v_lshl_add_u32 {vr(vt0)}, v0, 2, {sr(s2_)}
s_mov_b64 exec, 0xff
ds_write_b32 {vr(vt0)}, {vr(vH0)}
s_mov_b64 exec, -1
''')
V.free(vH0, 1)
P.waitall(vm=False)
P('s_barrier')
stamp()
for r in (vXE, vXO, vUE, vUO): V.free(r, 1)
V.free(vXR, 4)

P(f'''
v_and_b32 {vr(vt0)}, 31, v0
s_lshl_b32 {sr(s0)}, {sr(s_j)}, 12
v_lshl_add_u32 {vr(vCOL)}, {vr(vt0)}, 7, {sr(s0)}
s_mov_b32 {sr(s1)}, {WS_F1}
''')
poll(P, vCOL, sr(s1), vt0)
stamp()
vACC = V.get(64, 'acc'); vRING = V.get(64, 'ring'); vSUM = V.get(16, 'sums')
vRW = V.get(3, 'redw', align=1); vRR = V.get(1, 'redr'); vU = V.get(8, 'u')
s_z = S.get(2, 'zbase', align=1); s_part = S.get(2, 'partbase', align=1); s_wo = S.get(2, 'wo', align=1); s_fl = S.get(2, 'flw', align=1)
P(f'''
s_lshl_b32 {sr(s0)}, {sr(s_kh)}, 15
s_lshl_b32 {sr(s1)}, {sr(s_w)}, 13
s_add_u32 {sr(s0)}, {sr(s0)}, {sr(s1)}
s_add_u32 {sr(s0)}, {sr(s0)}, {WS_Z2}
s_lshl_b32 {sr(s1)}, {sr(s_jf)}, 18
s_add_u32 {sr(s_z+1)}, {sr(s0)}, {sr(s1)}
s_xor_b32 {sr(s1)}, {sr(s1)}, {1<<18}
s_add_u32 {sr(s_z)}, {sr(s0)}, {sr(s1)}
''')
RING = 16; AHEAD = 13
ztag = {}
def issue_z(p, fi):
    ps, k = fi // 8, fi % 8
    if k % 4 == 0:
        p(f's_add_u32 {sr(s3_)}, {sr(s_z + ps//4)}, {(ps%4)*65536 + k*1024}')
    ztag[fi] = p(f'buffer_load_dwordx4 {vr(vRING+4*(fi%RING),4)}, {vr(vL16)}, {sr(sWK,4)}, {sr(s3_)} offen offset:{(k%4)*1024} sc1', T('z'))
for fi in range(AHEAD): issue_z(P, fi)
P(f'''
s_lshl_b32 {sr(s0)}, {sr(s_lid)}, 2
s_add_u32 {sr(s0)}, {sr(s0)}, {sr(s_w)}
s_lshl_b32 {sr(s_fl)}, {sr(s0)}, 7
s_lshl_b32 {sr(s1)}, {sr(s0)}, 13
s_add_u32 {sr(s_part)}, {sr(s1)}, {WS_PART}
s_xor_b32 {sr(s0)}, {sr(s0)}, 4
s_lshl_b32 {sr(s_fl+1)}, {sr(s0)}, 7
s_lshl_b32 {sr(s1)}, {sr(s0)}, 13
s_add_u32 {sr(s_part+1)}, {sr(s1)}, {WS_PART}
s_mul_i32 {sr(s0)}, {sr(s_w)}, 6144
s_add_u32 {sr(s0)}, {sr(s0)}, {L_RED}
v_add_u32 {vr(vRR)}, {sr(s0)}, {vr(vL16)}
v_mul_u32_u24 {vr(vWI)}, 896, {vr(vR8)}
v_add_u32 {vr(vWI)}, {vr(vWI)}, {vr(vUW)}
s_mul_i32 {sr(s0)}, {sr(s_w)}, {8*896}
s_lshl_b32 {sr(s1)}, {sr(s_j)}, 7
s_add_u32 {sr(s_wo)}, {sr(s0)}, {sr(s1)}
s_lshl_b32 {sr(s_wo+1)}, {sr(s_w)}, 10
''')
for t2 in range(1, 4):
    P(f's_add_u32 {sr(s0)}, {sr(s_w)}, {t2}')
    P(f's_and_b32 {sr(s0)}, {sr(s0)}, 3')
    P(f's_mul_i32 {sr(s0)}, {sr(s0)}, 6144')
    P(f's_add_u32 {sr(s0)}, {sr(s0)}, {L_RED + (t2-1)*2048}')
    P(f'v_add_u32 {vr(vRW+t2-1)}, {sr(s0)}, {vr(vL16)}')

vPP = V.get(16, 'partner')
vHO = V.get(8, 'hout')
s_h = S.get(1, 'hbase')
P(f'''
s_lshl_b32 {sr(s0)}, {sr(s_tb)}, 2
s_add_u32 {sr(s0)}, {sr(s0)}, {sr(s_w)}
s_mul_i32 {sr(s0)}, {sr(s0)}, {2*28*1024}
s_lshl_b32 {sr(s1)}, {sr(s_jf)}, 11
s_add_u32 {sr(s0)}, {sr(s0)}, {sr(s1)}
s_add_u32 {sr(s_h)}, {sr(s0)}, {WS_H}
''')
parttag = {}
def reduce_pass(p, ps):
    acc = vACC + 32*(ps % 2)
    vRT = acc + 8
    p('s_barrier')
    for t2 in range(1, 4):
        for a in range(2):
            tw = p(f'ds_write_b128 {vr(vRW+t2-1)}, {vr(acc+(2*t2+a)*4,4)} offset:{a*1024}', T('rw'))
            p('s_nop 0'); p('s_nop 0')
    p('s_nop 0'); p('s_nop 0'); p('s_nop 0')
    p.wait(tw)
    p('s_barrier')
    tr = []
    for i in range(6):
        tr.append(p(f'ds_read_b128 {vr(vRT+4*i,4)}, {vr(vRR)} offset:{i*1024}', T('rr')))
    p('s_nop 0'); p('s_nop 0'); p('s_nop 0')
    dst = vSUM + 8*(ps % 2)
    p.wait(tr[1])
    for i in range(8): p(f'v_add_f32 {vr(dst+i)}, {vr(acc+i)}, {vr(vRT+i)}')
    p.wait(tr[5])
    for i in range(8): p(f'v_add_f32 {vr(vRT+8+i)}, {vr(vRT+8+i)}, {vr(vRT+16+i)}')
    for i in range(8): p(f'v_add_f32 {vr(dst+i)}, {vr(dst+i)}, {vr(vRT+8+i)}')
    if ps < 4:
        p(f's_add_u32 {sr(s2_)}, {sr(s_part)}, {ps*2048}')
        p(f'buffer_store_dwordx4 {vr(dst,4)}, {vr(vL16)}, {sr(sWK,4)}, {sr(s2_)} offen sc1')
        parttag[ps] = p(f'buffer_store_dwordx4 {vr(dst+4,4)}, {vr(vL16)}, {sr(sWK,4)}, {sr(s2_)} offen offset:1024 sc1', T('part'))
def flag_wave(p, base):
    p(f's_add_u32 {sr(s2_)}, {sr(s_fl)}, {base}')
    p(f'buffer_store_dwordx4 {vr(vTAG,4)}, {vr(vFLW)}, {sr(sWK,4)}, {sr(s2_)} offen sc1')
def get_partner(p, base, half):
    p(f's_add_u32 {sr(s1)}, {sr(s_fl+1)}, {base}')
    p(f'v_mov_b32 {vr(vt1)}, 0')
    poll(p, vt1, sr(s1), vt0)
    p(f's_add_u32 {sr(s0)}, {sr(s_part+1)}, {half*4096}')
    for i in range(4):
        t = p(f'buffer_load_dwordx4 {vr(vPP+4*i,4)}, {vr(vL16)}, {sr(sWK,4)}, {sr(s0)} offen offset:{i*1024} sc1', T('pp'))
    return t
def finalize(p, half, tag):
    p.wait(tag)
    for e in range(2):
        sm = vSUM + 8*e
        for a in range(2):
            for r in range(4):
                i = 4*a + r
                p(f'v_add_f32 {vr(sm+i)}, {vr(sm+i)}, {vr(vPP+8*e+i)}')
                p(f'v_add_f32 {vr(sm+i)}, {vr(sm+i)}, {vr(vBS+a)}')
                p(f'v_mul_f32 {vr(sm+i)}, {vr(sm+i)}, {vr(vZ1+(a*4+2*half+e)*4+r)}')
            for h in range(2):
                p(f'v_cvt_pk_bf16_f32 {vr(vHO+4*a+2*e+h)}, {vr(sm+4*a+2*h)}, {vr(sm+4*a+2*h+1)}')
    for a in range(2):
        p(f's_add_u32 {sr(s0)}, {sr(s_h)}, {a*28*1024 + half*1024}')
        t = p(f'buffer_store_dwordx4 {vr(vHO+4*a,4)}, {vr(vL16)}, {sr(sWK,4)}, {sr(s0)} offen sc1', T('hst'))
    return t
wotag = []
def issue_wo(p, ks):
    p(f's_add_u32 {sr(s0)}, {sr(s_wo)}, {ks*32*896}')
    wotag.append(dma(p, vWI, sWO, sr(s0), s_wo+1, ks*4096))

for ps in range(8):
    M = Stream()
    acc = vACC + 32*(ps % 2)
    for k in range(8):
        fi = ps*8 + k
        M.wait(ztag[fi])
        for tau in range(8):
            d = vr(acc + 4*tau, 4)
            M(f'v_mfma_f32_16x16x32_bf16 {d}, {vr(vRING+4*(fi%RING),4)}, {ar((k*8+tau)*4,4)}, {"0" if k == 0 else d}')
            if tau == 1 and fi + AHEAD < 64: issue_z(M, fi + AHEAD)
            if tau == 4 and fi % 2 == 0 and fi // 2 < 28: issue_wo(M, fi // 2)
    F = Stream()
    if ps == 0:
        F(f'''
        s_lshl_b32 {sr(s1)}, {sr(s_lid)}, 13
        s_lshl_b32 {sr(s2_)}, {sr(s_w)}, 11
        s_add_u32 {sr(s1)}, {sr(s1)}, {sr(s2_)}
        s_add_u32 {sr(s1)}, {sr(s1)}, {WS_KVT}
        buffer_load_dwordx4 {vr(vU,4)}, {vr(vL16)}, {sr(sWK,4)}, {sr(s1)} offen sc1
        ''')
        F(f'buffer_load_dwordx4 {vr(vU+4,4)}, {vr(vL16)}, {sr(sWK,4)}, {sr(s1)} offen offset:1024 sc1', 'uld')
    if ps > 0: reduce_pass(F, ps - 1)
    if ps == 3: F.wait(parttag[1]); flag_wave(F, WS_FA)
    if ps == 5: F.wait(parttag[3]); flag_wave(F, WS_FB)
    P.extend(merge(M, F, start=8, end=60))
    if ps == 5:
        ppa = get_partner(P, WS_FA, 0)
    if ps == 6:
        hst = finalize(P, 0, ppa)
        ppb = get_partner(P, WS_FB, 1)
reduce_pass(P, 7)
hst = finalize(P, 1, ppb)
stamp()
for r, n in ((vACC,64),(vRING,64),(vSUM,16),(vRW,3),(vRR,1),(vPP,16),(vHO,8),(vZ,32),(vBS,2),(vWI,1),(vUW,1)): V.free(r, n)

vWR2 = V.get(4, 'wr2', align=1)
for nt in range(4): P(f'v_add_u32 {vr(vWR2+nt)}, 57344, {vr(vWR+nt)}')
P.wait(wotag[-1], 'uld')
P('s_barrier')
P(f'''
s_lshr_b32 {sr(s0)}, {sr(s_w)}, 1
s_mul_i32 {sr(s2_)}, {sr(s0)}, {USTR}
s_add_u32 {sr(s2_)}, {sr(s2_)}, {L_U}
s_and_b32 {sr(s3_)}, {sr(s_w)}, 1
s_lshl_b32 {sr(s1)}, {sr(s3_)}, 11
s_add_u32 {sr(s1)}, {sr(s1)}, {sr(s2_)}
v_add_u32 {vr(vt0)}, {sr(s1)}, {vr(vL16)}
ds_write_b128 {vr(vt0)}, {vr(vU,4)}
ds_write_b128 {vr(vt0)}, {vr(vU+4,4)} offset:1024
s_lshl_b32 {sr(s1)}, {sr(s3_)}, 8
s_add_u32 {sr(s1)}, {sr(s1)}, {sr(s2_)}
v_lshl_add_u32 {vr(vt0)}, v0, 2, {sr(s1)}
v_mov_b32 {vr(vt1)}, 0
ds_write_b32 {vr(vt0)}, {vr(vt1)} offset:4096
''')
V.free(vU, 8)
for ks in range(16):
    if ks < 14: read_w(P, ks, ks*16, vWR, agpr=True)
    else: read_w(P, ks-14, ks*16, vWR2, agpr=True)
vHA = V.get(4, 'haddr', align=1); vUA = V.get(1, 'uaddr')
P(f'''
v_and_b32 {vr(vt0)}, 15, v0
v_lshrrev_b32 {vr(vt1)}, 4, v0
v_lshlrev_b32 {vr(vt1)}, 4, {vr(vt1)}
s_lshl_b32 {sr(s1)}, {sr(s3_)}, 8
s_add_u32 {sr(s2_)}, {sr(s2_)}, {sr(s1)}
s_add_u32 {sr(s2_)}, {sr(s2_)}, 480
v_lshlrev_b32 {vr(vt2)}, 5, {vr(vt0)}
v_sub_u32 {vr(vt2)}, {sr(s2_)}, {vr(vt2)}
v_add_u32 {vr(vUA)}, {vr(vt2)}, {vr(vt1)}
s_mul_i32 {sr(s0)}, {sr(s0)}, {2*HSTR}
s_add_u32 {sr(s0)}, {sr(s0)}, {sr(s1)}
s_add_u32 {sr(s0)}, {sr(s0)}, {L_HC}
v_and_b32 {vr(vt2)}, 1, v0
v_cmp_eq_u32 vcc, 1, {vr(vt2)}
v_mov_b32 {vr(vt2)}, {HSTR}
v_lshl_add_u32 {vr(vt1)}, {vr(vt0)}, 1, {vr(vt1)}
v_cndmask_b32 {vr(vt2)}, {vr(vt2)}, 2, vcc
v_add3_u32 {vr(vHA)}, {vr(vt1)}, {vr(vt2)}, {sr(s0)}
''')
for m in range(1, 4): P(f'v_add_u32 {vr(vHA+m)}, {1024*m}, {vr(vHA)}')
P.wait(hst)
P.waitall(vm=False)
P('s_barrier')
flag_wg(P, WS_FH)
vCA = V.get(32, 'convacc'); vCF = V.get(128, 'convfrags')
def conv_reads(p, t0):
    b = vCF + 64*(t0 % 2)
    tg = {}
    for i in range(8):
        tg['B', i] = p(f'ds_read_b128 {vr(b+32+4*i,4)}, {vr(vUA)} offset:{512*(7-i)+64*t0}', T('cb'))
        o = (i % 2)*128 + t0*16
        p(f'ds_read2_b32 {vr(b+4*i,2)}, {vr(vHA+i//2)} offset0:{o} offset1:{o+1}')
        tg['A', i] = p(f'ds_read2_b32 {vr(b+4*i+2,2)}, {vr(vHA+i//2)} offset0:{o+2} offset1:{o+3}', T('ca'))
    return tg
tg = conv_reads(P, 0)
for t0 in range(4):
    b = vCF + 64*(t0 % 2)
    M = Stream()
    seen = set()
    order = sorted([(t1, qq) for t1 in range(8) for qq in range(8 - t1)], key=lambda x: (max(x), x))
    for (t1, qq) in order:
        M.wait(tg['A', max(t1, qq)])
        n = t1 + qq
        d = vr(vCA + 4*n, 4)
        first = (t0 == 0 and n not in seen); seen.add(n)
        M(f'v_mfma_f32_16x16x32_bf16 {d}, {vr(b+4*t1,4)}, {vr(b+32+4*qq,4)}, {"0" if first else d}')
    if t0 < 3:
        F = Stream(); ntg = conv_reads(F, t0+1)
        P.extend(merge(M, F, start=2, end=30)); tg = ntg
    else:
        P.extend(M)
V.free(vCF, 128)
P(f'''
v_lshrrev_b32 {vr(vt0)}, 4, v0
s_mul_i32 {sr(s0)}, {sr(s_w)}, 10240
v_lshl_add_u32 {vr(vt0)}, {vr(vt0)}, 6, {vr(vL16)}
v_add_u32 {vr(vt0)}, {sr(s0)}, {vr(vt0)}
''')
for n in range(8):
    P(f'ds_write_b128 {vr(vt0)}, {vr(vCA+4*n,4)} offset:{L_CB + n*1280}')
P(f'''
v_and_b32 {vr(vt1)}, 3, v0
v_mul_u32_u24 {vr(vt1)}, 320, {vr(vt1)}
v_lshrrev_b32 {vr(vt2)}, 2, v0
v_lshl_add_u32 {vr(vt1)}, {vr(vt2)}, 4, {vr(vt1)}
s_mul_i32 {sr(s0)}, {sr(s_w)}, 2560
v_add_u32 {vr(vt1)}, {sr(s0)}, {vr(vt1)}
s_lshl_b32 {sr(s0)}, {sr(s_w)}, 10
s_sub_u32 {sr(s0)}, {L_U + 4088 - 512}, {sr(s0)}
v_lshlrev_b32 {vr(vt2)}, 3, v0
v_sub_u32 {vr(vt2)}, {sr(s0)}, {vr(vt2)}
''')
P.waitall(vm=False)
P('s_barrier')
vUU = V.get(8, 'uu'); vYO = V.get(8, 'yout'); vD2 = V.get(2, 'd2', align=1)
for e in range(2):
    for src in range(4):
        P(f'ds_read_b128 {vr(vCA+16*e+4*src,4)}, {vr(vt1)} offset:{L_CB + src*10240 + e*1280}')
    for ch in range(2):
        P(f'ds_read_b64 {vr(vUU+4*e+2*ch,2)}, {vr(vt2)} offset:{ch*USTR + 512*(1-e)}')
P(f'''
v_lshlrev_b32 {vr(vD2)}, 16, {vr(vDD)}
v_and_b32 {vr(vD2+1)}, 0xffff0000, {vr(vDD)}
v_and_b32 {vr(vt0)}, 7, v0
v_lshlrev_b32 {vr(vt0)}, 4, {vr(vt0)}
v_lshl_add_u32 {vr(vt0)}, {vr(vR8)}, 12, {vr(vt0)}
s_lshl_b32 {sr(s0)}, {sr(s_j)}, 18
s_lshl_b32 {sr(s1)}, {sr(s_w)}, 16
s_add_u32 {sr(s0)}, {sr(s0)}, {sr(s1)}
s_lshl_b32 {sr(s1)}, {sr(s_t64)}, 7
s_add_u32 {sr(s0)}, {sr(s0)}, {sr(s1)}
s_add_u32 {sr(s0)}, {sr(s0)}, {WS_Y}
''')
P.waitall(vm=False)
for e in range(2):
    for ch in range(2):
        b = vCA + 16*e + 8*ch
        for r in range(4):
            src = vUU + 4*e + 2*ch + (0 if r >= 2 else 1)
            P(f'v_add_f32 {vr(b+r)}, {vr(b+r)}, {vr(b+4+r)}')
            P(f'v_lshlrev_b32 {vr(b+4+r)}, 16, {vr(src)}' if r % 2 == 1 else f'v_and_b32 {vr(b+4+r)}, 0xffff0000, {vr(src)}')
            P(f'v_fmac_f32 {vr(b+r)}, {vr(vD2+ch)}, {vr(b+4+r)}')
    for r in range(4):
        P(f'v_cvt_pk_bf16_f32 {vr(vYO+4*e+r)}, {vr(vCA+16*e+r)}, {vr(vCA+16*e+8+r)}')
    yst = P(f'buffer_store_dwordx4 {vr(vYO+4*e,4)}, {vr(vt0)}, {sr(sWK,4)}, {sr(s0)} offen sc1', T('yst'))
    if e == 0: P(f's_add_u32 {sr(s0)}, {sr(s0)}, 32768')
for r, n in ((vCA,32),(vUU,8),(vD2,2),(vDD,1),(vHA,4),(vUA,1)): V.free(r, n)
stamp()

P(f'''
v_min_u32 {vr(vt1)}, 13, v0
v_lshrrev_b32 {vr(vt2)}, 1, {vr(vt1)}
v_and_b32 {vr(vt1)}, 1, {vr(vt1)}
v_lshlrev_b32 {vr(vt1)}, 7, {vr(vt1)}
v_lshl_add_u32 {vr(vt1)}, {vr(vt2)}, 12, {vr(vt1)}
s_lshl_b32 {sr(s1)}, {sr(s_tb)}, 8
s_add_u32 {sr(s1)}, {sr(s1)}, {WS_FH}
''')
poll(P, vt1, sr(s1), vt0)
V.free(vYO, 8)
P('s_barrier')
flag_wg(P, WS_FY)
vHF = V.get(112, 'hfrags'); vOA = V.get(16, 'oacc'); vWF = V.get(32, 'wfrags'); vY = V.get(8, 'y')
P(f'''
s_lshl_b32 {sr(s0)}, {sr(s_tb)}, 3
s_lshl_b32 {sr(s1)}, {sr(s_w)}, 1
s_add_u32 {sr(s0)}, {sr(s0)}, {sr(s1)}
s_add_u32 {sr(s3_)}, {sr(s0)}, {sr(s_kh)}
s_mul_i32 {sr(s0)}, {sr(s3_)}, {28*1024}
s_add_u32 {sr(s0)}, {sr(s0)}, {WS_H}
''')
ht = []
for ks in range(28):
    ht.append(P(f'buffer_load_dwordx4 {vr(vHF+4*ks,4)}, {vr(vL16)}, {sr(sWK,4)}, {sr(s0)} offen offset:{(ks%4)*1024} sc1', T('h')))
    if ks % 4 == 3: P(f's_add_u32 {sr(s0)}, {sr(s0)}, 4096')
wt = None
for ks in range(28):
    P.wait(ht[ks])
    nxt = read_w(P, ks+1-14, vWF + 16*((ks+1) % 2), vWR2) if 16 <= ks+1 < 28 else None
    for mt in range(4):
        d = vr(vOA+4*mt, 4)
        if ks < 16: A = ar(ks*16+4*mt, 4)
        else:
            P.wait(wt[mt]); A = vr(vWF + 16*(ks % 2) + 4*mt, 4)
        P(f'v_mfma_f32_16x16x32_bf16 {d}, {A}, {vr(vHF+4*ks,4)}, {"0" if ks == 0 else d}')
    wt = nxt
stamp()
P(f's_mov_b32 {sr(s1)}, {WS_FY}')
poll(P, vCOL, sr(s1), vt0)
P(f'''
s_or_b32 {sr(s0)}, {sr(s_lid)}, {sr(s_w)}
s_cmp_eq_u32 {sr(s0)}, 0
s_cselect_b32 {sr(s0)}, 0, 0x40000000
v_mov_b32 {vr(vt0)}, {sr(s0)}
buffer_store_dword {vr(vTAG)}, {vr(vt0)}, {sr(sWK,4)}, 0 offen
v_and_b32 {vr(vt0)}, 15, v0
v_lshrrev_b32 {vr(vt1)}, 4, v0
v_lshlrev_b32 {vr(vt2)}, 8, {vr(vt1)}
v_lshl_add_u32 {vr(vt2)}, {vr(vt0)}, 2, {vr(vt2)}
s_lshl_b32 {sr(s0)}, {sr(s_j)}, 18
s_lshr_b32 {sr(s1)}, {sr(s3_)}, 1
s_lshl_b32 {sr(s1)}, {sr(s1)}, 12
s_add_u32 {sr(s0)}, {sr(s0)}, {sr(s1)}
s_lshl_b32 {sr(s1)}, {sr(s_kh)}, 6
s_add_u32 {sr(s0)}, {sr(s0)}, {sr(s1)}
s_add_u32 {sr(s0)}, {sr(s0)}, {WS_Y}
''')
yt = []
for mt in range(4):
    for e in range(2):
        yt.append(P(f'buffer_load_dword {vr(vY+2*mt+e)}, {vr(vt2)}, {sr(sWK,4)}, {sr(s0)} offen offset:{(8*mt+e)*128} sc1', T('y')))
P(f'''
v_mul_u32_u24 {vr(vt0)}, 896, {vr(vt0)}
v_and_b32 {vr(vt2)}, 1, {vr(vt1)}
v_lshl_add_u32 {vr(vt0)}, {vr(vt2)}, 5, {vr(vt0)}
v_lshrrev_b32 {vr(vt2)}, 1, {vr(vt1)}
v_lshl_add_u32 {vr(vt0)}, {vr(vt2)}, 4, {vr(vt0)}
s_mul_i32 {sr(s0)}, {sr(s3_)}, {16*896}
s_lshl_b32 {sr(s1)}, {sr(s_j)}, 7
s_add_u32 {sr(s0)}, {sr(s0)}, {sr(s1)}
''')
vQF = V.get(16, 'qf'); vOO = V.get(8, 'out')
for i in range(16):
    src = vQ + i//2
    P(f'v_lshlrev_b32 {vr(vQF+i)}, 16, {vr(src)}' if i % 2 == 0 else f'v_and_b32 {vr(vQF+i)}, 0xffff0000, {vr(src)}')
    P(f'v_mul_f32 {vr(vQF+i)}, {vr(vQF+i)}, {vr(vGT)}')
    P(f'v_mul_f32 {vr(vOA+i)}, {vr(vOA+i)}, {vr(vGT+1)}')
for i2 in range(8):
    P.wait(yt[i2])
    P(f'v_lshlrev_b32 {vr(vt1)}, 16, {vr(vY+i2)}')
    P(f'v_and_b32 {vr(vt2)}, 0xffff0000, {vr(vY+i2)}')
    P(f'v_fmac_f32 {vr(vOA+2*i2)}, {vr(vQF+2*i2)}, {vr(vt1)}')
    P(f'v_fmac_f32 {vr(vOA+2*i2+1)}, {vr(vQF+2*i2+1)}, {vr(vt2)}')
    P(f'v_cvt_pk_bf16_f32 {vr(vOO+i2)}, {vr(vOA+2*i2)}, {vr(vOA+2*i2+1)}')
for m2 in range(2):
    P(f'v_permlane16_swap_b32 {vr(vOO+4*m2)}, {vr(vOO+4*m2+2)}')
    P(f'v_permlane16_swap_b32 {vr(vOO+4*m2+1)}, {vr(vOO+4*m2+3)}')
    P(f'buffer_store_dwordx4 {vr(vOO+4*m2,4)}, {vr(vt0)}, {sr(sO,4)}, {sr(s0)} offen offset:{64*m2}')
if PROFILE:
    P.waitall()
    stamp()
    stamp()
    P(f'''
    s_lshl_b32 {sr(s0)}, s2, 2
    s_add_u32 {sr(s0)}, {sr(s0)}, {sr(s_w)}
    s_lshl_b32 {sr(s0)}, {sr(s0)}, 7
    s_add_u32 {sr(s0)}, {sr(s0)}, {WS_PROF}
    v_lshlrev_b32 {vr(vt0)}, 2, v0
    s_mov_b32 exec_hi, 0
    buffer_store_dword {vr(vPROF)}, {vr(vt0)}, {sr(sWK,4)}, {sr(s0)} offen
    ''')
    print('stamps', nstamp[0]-1, file=sys.stderr)
    sp = [a for a in sys.argv if a.startswith('--spin=')]
    if sp:
        a_, b_ = map(int, sp[0][7:].split(','))
        P(f'''
        v_readlane_b32 {sr(s0)}, {vr(vPROF)}, {a_}
        v_readlane_b32 {sr(s1)}, {vr(vPROF)}, {b_}
        v_readlane_b32 {sr(s2_)}, {vr(vPROF)}, {nstamp[0]-2}
        s_nop 4
        s_sub_u32 {sr(s0)}, {sr(s1)}, {sr(s0)}
        s_lshl_b32 {sr(s0)}, {sr(s0)}, 2
        s_min_u32 {sr(s0)}, {sr(s0)}, 100000
        L_spin:
        s_memrealtime {sr(s_st,2)}
        ''')
        P.waitall(vm=False)
        P(f'''
        s_sub_u32 {sr(s1)}, {sr(s_st)}, {sr(s2_)}
        s_cmp_lt_u32 {sr(s1)}, {sr(s0)}
        s_cbranch_scc1 L_spin
        ''')
P('L_end:')

lines = fix_hazards(resolve(P))
ref = open(f'cdna_kernels/{NAME}.s.ref').read()
head = [l for l in ref.split('\n') if l.startswith(';') and '@launch' not in l]
out = '\n'.join(head) + f'\n; @launch grid=(224,1,1) block=(256,1,1) lds={LDS}\n'
out += f'''.amdgcn_target "amdgcn-amd-amdhsa--gfx950"
.text
.globl {NAME}_kernel
.p2align 8
.type {NAME}_kernel,@function
{NAME}_kernel:
'''
out += '\n'.join(('' if l.endswith(':') else '    ') + l for l in lines)
out += f'''
    s_endpgm
.fill 512, 4, 0xbf800000
    s_endpgm
.section .rodata,"a"
.p2align 6
.amdhsa_kernel {NAME}_kernel
  .amdhsa_next_free_vgpr 512
  .amdhsa_next_free_sgpr 102
  .amdhsa_accum_offset 256
  .amdhsa_group_segment_fixed_size 0
  .amdhsa_kernarg_size 120
  .amdhsa_user_sgpr_count 2
  .amdhsa_user_sgpr_kernarg_segment_ptr 1
  .amdhsa_system_sgpr_workgroup_id_x 1
  .amdhsa_float_denorm_mode_32 3
.end_amdhsa_kernel
'''
open(OUTP, 'w').write(out)
print('instructions', len(lines), 'vgpr peak', V.peak, 'sgpr peak', S.peak, file=sys.stderr)
```
